```python
import torch

def _softmax(x, axis=-1):
    return torch.softmax(x, dim=axis)
def _gelu(x):
    return torch.nn.functional.gelu(x, approximate="tanh")
def _silu(x):
    return torch.nn.functional.silu(x)
def _sigmoid(x):
    return torch.sigmoid(x)
def _layernorm(x, axis=-1, eps=1e-5):
    m = x.mean(dim=axis, keepdim=True)
    v = x.var(dim=axis, keepdim=True, unbiased=False)
    return (x - m) / torch.sqrt(v + eps)
def _scatter_add(tgt, idx, src, axis=0):
    return tgt.clone().index_add_(axis, idx, src)
def _segment_sum(src, seg, n):
    out = torch.zeros((n,) + src.shape[1:], dtype=src.dtype)
    return out.index_add_(0, seg, src)
def _pad(x, pw):
    flat = tuple(v for pair in reversed(pw) for v in pair)
    return torch.nn.functional.pad(x, flat)

kernel_name = 'standalone__mha_block_cached__near_ridge'

def setup_inputs():

    _w = (lambda a: (lambda t: t.to(torch.bfloat16) if t.is_floating_point() else t)(torch.as_tensor(a)))
    B, Sq, D = 8, 128, 576
    H, Sk, Dh = 32, 512, 128
    return {
        "x": _w((lambda *s: torch.randn(*s, dtype=torch.bfloat16) * 0.8)(B, Sq, D)),
        "k_cache": _w((lambda *s: torch.randn(*s, dtype=torch.bfloat16) * 0.8)(B, H, Sk, Dh)),
        "v_cache": _w((lambda *s: torch.randn(*s, dtype=torch.bfloat16) * 0.05)(B, H, Sk, Dh)),
        "wq": _w((lambda *s: torch.randn(*s, dtype=torch.bfloat16) * 0.8)(D, H * Dh) * (D ** -0.5)),
        "wo": _w((lambda *s: torch.randn(*s, dtype=torch.bfloat16) * 0.05)(H * Dh, D) * ((H * Dh) ** -0.5)),
    }

def reference(x, k_cache, v_cache, wq, wo):
    B, Sq, D = x.shape
    H, Dh = 32, 128
    q = (lambda x, *d: x.permute(*d))((x @ wq).reshape(B, Sq, H, Dh), 0, 2, 1, 3)
    scores = torch.einsum("bhqd,bhkd->bhqk", q, k_cache) * (Dh ** -0.5)
    p = _softmax(scores, axis=-1)
    o = torch.einsum("bhqk,bhkd->bhqd", p, v_cache)
    return (lambda x, *d: x.permute(*d))(o, 0, 2, 1, 3).reshape(B, Sq, H * Dh) @ wo
```

```python
import re

REG_RE = re.compile(r'(?<![\w.])([vas])\[(\d+):(\d+)\]|(?<![\w.\[])([vas])(\d+)(?![\w\]:])|\b(vcc|exec|m0|scc)\b')

def regs_of(tok):
    out = []
    for m in REG_RE.finditer(tok):
        if m.group(1):
            k = m.group(1); lo = int(m.group(2)); hi = int(m.group(3))
            out += [f"{k}{i}" for i in range(lo, hi + 1)]
        elif m.group(4):
            out.append(f"{m.group(4)}{m.group(5)}")
        else:
            out.append(m.group(6))
    return out

TRANS = ('v_exp_f32', 'v_log_f32', 'v_rcp_f32', 'v_rsq_f32', 'v_sqrt_f32', 'v_sin_f32', 'v_cos_f32', 'v_rcp_iflag_f32')
SALU_NODST = ('s_cmp', 's_waitcnt', 's_barrier', 's_branch', 's_cbranch', 's_nop', 's_setprio', 's_sleep', 's_endpgm', 's_bitcmp', 's_setreg', 's_sethalt')

class Ins:
    __slots__ = ('text', 'op', 'dst', 'src', 'kind', 'passes', 'cdst', 'lds_dma', 'label', 'wide_store', 'srcC', 'srcAB')
    def __init__(self, text):
        self.text = text
        self.label = False
        self.passes = 0
        self.srcC = []; self.srcAB = []
        self.lds_dma = False; self.wide_store = False
        t = text.split(';')[0].strip()
        parts = t.split(None, 1)
        op = parts[0]; self.op = op
        rest = parts[1] if len(parts) > 1 else ''
        ops = []
        depth = 0; cur = ''
        for ch in rest:
            if ch == '[' or ch == '(': depth += 1
            if ch == ']' or ch == ')': depth -= 1
            if ch == ',' and depth == 0:
                ops.append(cur.strip()); cur = ''
            else: cur += ch
        if cur.strip(): ops.append(cur.strip())
        dst = []; src = []
        R = regs_of
        if op.startswith('v_mfma'):
            self.kind = 'mfma'
            self.passes = 8 if '32x32x16' in op else 4 if '16x16x32' in op else None
            assert self.passes
            dst = R(ops[0]); self.srcAB = R(ops[1]) + R(ops[2]); self.srcC = R(ops[3]); src = self.srcAB + self.srcC
        elif op.startswith('ds_read') or op.startswith('ds_bpermute') or op.startswith('ds_swizzle'):
            self.kind = 'ds'; dst = R(ops[0]); src = sum((R(o) for o in ops[1:]), [])
        elif op.startswith('ds_write'):
            self.kind = 'ds'; src = sum((R(o) for o in ops), [])
        elif op.startswith('buffer_load') or op.startswith('global_load'):
            self.kind = 'vmem'
            if re.search(r'\blds\b', rest) or 'load_lds' in op:
                self.lds_dma = True; src = sum((R(o) for o in ops), []) + ['m0']
            else:
                dst = R(ops[0]); src = sum((R(o) for o in ops[1:]), [])
        elif op.startswith('buffer_store') or op.startswith('global_store'):
            self.kind = 'vmem'; src = sum((R(o) for o in ops), [])
            if 'x4' in op or 'x3' in op: self.wide_store = True
        elif op.startswith('buffer_atomic') or op.startswith('global_atomic'):
            self.kind = 'vmem'
            if re.search(r'\bsc0\b', rest):
                if op.startswith('global'): dst = R(ops[0]); src = sum((R(o) for o in ops[1:]), [])
                else: dst = R(ops[0]); src = sum((R(o) for o in ops), [])
            else: src = sum((R(o) for o in ops), [])
        elif op in ('buffer_wbl2', 'buffer_inv'):
            self.kind = 'vmem'
        elif op.startswith('s_load') or op.startswith('s_memtime') or op.startswith('s_memrealtime') or op.startswith('s_buffer_load'):
            self.kind = 'smem'; dst = R(ops[0]); src = sum((R(o) for o in ops[1:]), [])
        elif op.startswith('s_'):
            self.kind = 'salu'
            if op.startswith(SALU_NODST):
                src = sum((R(o) for o in ops), [])
            else:
                dst = R(ops[0]); src = sum((R(o) for o in ops[1:]), [])
                if op.startswith('s_and_saveexec') or op.startswith('s_or_saveexec'): dst += ['exec']; src += ['exec']
        elif op.startswith('v_'):
            self.kind = 'trans' if op.startswith(TRANS) else 'valu'
            if op.startswith('v_permlane') and 'swap' in op:
                dst = R(ops[0]) + R(ops[1]); src = list(dst); self.kind = 'perm'
            elif op.startswith('v_cmp'):
                dst = R(ops[0]); src = sum((R(o) for o in ops[1:]), [])
            elif op.startswith(('v_fmac', 'v_mac', 'v_dot2c', 'v_pk_fmac')):
                dst = R(ops[0]); src = sum((R(o) for o in ops), [])
            elif op.startswith(('v_add_co', 'v_addc_co', 'v_sub_co', 'v_subb_co')):
                dst = R(ops[0]) + R(ops[1]); src = sum((R(o) for o in ops[2:]), [])
            elif op.startswith(('v_readfirstlane', 'v_readlane')):
                dst = R(ops[0]); src = sum((R(o) for o in ops[1:]), []); self.kind = 'rdlane'
            else:
                dst = R(ops[0]); src = sum((R(o) for o in ops[1:]), [])
                if op.startswith('v_cndmask') and len(ops) == 3: src += ['vcc']
            if '_dpp' in op or 'row_' in rest or 'quad_perm' in rest: self.kind = 'dpp'
        else:
            raise ValueError("unknown op: " + text)
        self.dst = dst; self.src = src

VALU_KINDS = ('valu', 'trans', 'perm', 'rdlane', 'dpp')

class Prog:
    def __init__(self, check=True):
        self.out = []
        self.hist = []
        self.lgq = []
        self.vmq = []
        self.uid = 0
        self.nops = 0
        self.stats = {}
        self.smem_pending = []
        self.unsafe_stamps = False
    def raw(self, s): self.out.append(s)
    def c(self, s): self.out.append("    ; " + s)
    def newlabel(self, p="L"):
        self.uid += 1; return f"{p}_{self.uid}"
    def label(self, l):
        self.out.append(l + ":")
    def reset_state(self):
        self.lgq = []; self.vmq = []; self.smem_pending = []
    def barrier_hazards(self, n=20):
        need = 0
        d = 0
        for ins, ws in reversed(self.hist):
            if ins.kind == 'mfma':
                req = {4: 8, 8: 12}[ins.passes]
                need = max(need, req - d)
            elif ins.kind in VALU_KINDS:
                need = max(need, 5 - d)
            d += ws
            if d > 20: break
        self.nop(need)
    def nop(self, n):
        while n > 0:
            k = min(n, 16)
            i = Ins(f"s_nop {k-1}")
            self.out.append(f"    s_nop {k-1}")
            self.hist.append((i, k)); self.nops += k
            n -= k
    def wait_lgkm(self, n):
        if len(self.lgq) > n or self.smem_pending:
            if self.smem_pending: n = 0
            self._emit_plain(f"s_waitcnt lgkmcnt({min(n,15)})")
            self.lgq = self.lgq[len(self.lgq) - n:] if n > 0 else []
            self.smem_pending = []
    def wait_vm(self, n):
        if len(self.vmq) > n:
            assert n <= 63
            self._emit_plain(f"s_waitcnt vmcnt({n})")
            self.vmq = self.vmq[len(self.vmq) - n:] if n > 0 else []
    def wait_vm_tag(self, tags):
        if not isinstance(tags, (list, tuple, set)): tags = [tags]
        last = -1
        for i, e in enumerate(self.vmq):
            if e[0] in tags: last = i
        if last >= 0:
            n = len(self.vmq) - 1 - last
            self.wait_vm(min(n, 63))
    def need(self, regs):
        regs = set(regs); last = -1
        for i, e in enumerate(self.lgq):
            if e[0] & regs: last = i
        if last >= 0: self.wait_lgkm(len(self.lgq) - 1 - last)
    def wait_all(self):
        if self.lgq or self.smem_pending or self.vmq:
            self._emit_plain("s_waitcnt vmcnt(0) lgkmcnt(0)")
        self.lgq = []; self.vmq = []; self.smem_pending = []
    def _emit_plain(self, text):
        i = Ins(text); self.out.append("    " + text); self.hist.append((i, 1))
        if len(self.hist) > 64: self.hist = self.hist[-48:]
    def __call__(self, text, tag=None):
        for line in text.split("\n"):
            line = line.strip()
            if line: self.emit(line, tag)
    def emit(self, text, tag=None):
        ins = Ins(text)
        touched = set(ins.src) | set(ins.dst)
        last = -1
        for i, e in enumerate(self.lgq):
            if e[0] & touched: last = i
            elif e[1] & set(ins.dst) and ins.kind != 'ds': last = i
        if last >= 0: self.wait_lgkm(len(self.lgq) - 1 - last)
        if self.smem_pending and (set(self.smem_pending) & touched): self.wait_lgkm(0)
        last = -1
        for i, e in enumerate(self.vmq):
            if e[1] & touched: last = i
        if last >= 0: self.wait_vm(min(63, len(self.vmq) - 1 - last))
        need = 0; d = 0
        S = set(ins.src); D = set(ins.dst)
        for prev, ws in reversed(self.hist):
            PD = set(prev.dst)
            req = 0
            if prev.kind in VALU_KINDS:
                vd = {r for r in PD if r[0] in 'va' and r not in ('vcc',)}
                sd = {r for r in PD if r[0] == 's' or r in ('vcc', 'exec')}
                if ins.kind == 'mfma' and vd & S: req = max(req, 2)
                if ins.kind == 'rdlane' and vd & S: req = max(req, 1)
                if ins.kind in ('perm', 'dpp') and vd & S: req = max(req, 2)
                if prev.kind == 'trans' and ins.kind in VALU_KINDS + ('mfma',) and vd & S and ins.kind != 'trans': req = max(req, 1)
                if prev.kind == 'trans' and ins.kind == 'trans' and vd & S: req = max(req, 1)
                if sd & S:
                    if ins.kind in VALU_KINDS: req = max(req, 2)
                    if ins.kind == 'mfma': req = max(req, 4)
                    if ins.kind == 'vmem': req = max(req, 5)
                    if ins.kind == 'rdlane': req = max(req, 4)
                    if ins.kind in ('salu', 'smem'): req = max(req, 4)
                if 'exec' in PD and ins.kind in ('mfma', 'dpp', 'perm', 'rdlane'): req = max(req, 5)
            if prev.kind == 'mfma':
                p = prev.passes
                big = {4: 8, 8: 12}[p]
                if ins.kind == 'mfma':
                    if PD & set(ins.srcAB): req = max(req, big)
                    if PD & set(ins.srcC):
                        if ins.srcC == prev.dst and ins.passes == p: pass
                        else: req = max(req, {4: 6, 8: 10}[p])
                    if PD & D and not (ins.dst == prev.dst and ins.srcC == prev.dst) and not (PD & set(ins.srcC)):
                        req = max(req, {4: 6, 8: 10}[p])
                elif ins.kind in VALU_KINDS or ins.kind in ('vmem', 'ds'):
                    if PD & (S | D): req = max(req, big)
                    if ins.kind in VALU_KINDS and set(prev.srcC) & D: req = max(req, {4: 3, 8: 7}[p])
                    if ins.kind in ('ds', 'vmem') and set(prev.srcC) & D: req = max(req, {4: 3, 8: 7}[p])
            if prev.kind == 'salu' and 'm0' in PD and ins.lds_dma: req = max(req, 1)
            if prev.wide_store and ins.kind in VALU_KINDS + ('mfma',) and set(prev.src) & D: req = max(req, 2)
            if prev.kind == 'salu' and 'exec' in PD and ins.kind in ('mfma',): req = max(req, 1)
            need = max(need, req - d)
            d += ws
            if d > 20: break
        if need > 0: self.nop(need)
        self.out.append("    " + text)
        self.hist.append((ins, 1 if ins.op != 's_nop' else int(text.split()[1]) + 1))
        if len(self.hist) > 64: self.hist = self.hist[-48:]
        self.stats[ins.kind] = self.stats.get(ins.kind, 0) + 1
        if ins.kind == 'ds':
            self.lgq.append((set(ins.dst), set(ins.src)))
            assert len(self.lgq) <= 15 or True
            if len(self.lgq) > 15:
                pass
        elif ins.kind == 'smem':
            if self.unsafe_stamps and ins.op in ('s_memrealtime', 's_memtime'):
                self.lgq.append((set(ins.dst), set()))
            else:
                self.smem_pending += ins.dst if ins.dst else ['__x']
        elif ins.kind == 'vmem':
            self.vmq.append((tag, set(ins.dst), set(ins.src)))
            if len(self.vmq) > 63:
                raise AssertionError("more than 63 vmem outstanding")
    def text(self): return "\n".join(self.out) + "\n"
```

```python
from prog import *

WS_PART = 8 << 20
WOT = 36864

class GMap:
    vGA = 8
    vGB = 12
    vGS = 13
    vB = 16
    vRING = 144
    NRING = 6
    def acc(self, nb, r):
        i = nb*2 + r
        if i < 14: return f"v[{168+4*i}:{168+4*i+3}]", [f"v{168+4*i+k}" for k in range(4)]
        j = i - 14
        return f"a[{4*j}:{4*j+3}]", [f"a{4*j+k}" for k in range(4)]

def g_addr_setup(p, M, sW, tile_base):
    p("v_and_b32 v2, 15, v1\nv_lshrrev_b32 v3, 4, v1")
    p("v_lshrrev_b32 v4, 2, v2\nv_and_b32 v5, 3, v2")
    p("v_lshl_add_u32 v4, v3, 2, v4")
    p("v_mul_u32_u24 v4, 288, v4")
    p("v_lshl_add_u32 v4, v5, 3, v4")
    for i in range(4):
        p(f"v_add_u32 v{M.vGA+i}, {tile_base[i]}, v4")
    p(f"v_lshlrev_b32 v{M.vGB}, 4, v1")
    p(f"s_lshl_b32 s29, s{sW}, 13\nv_add_u32 v{M.vGB}, s29, v{M.vGB}")

def g_bload(p, M, srd, hl, aux=''):
    for db in range(4):
        for r in range(2):
            reg = M.vB + ((hl*4 + db)*2 + r)*4
            off = r*4096 + db*1024
            p(f"s_mov_b32 s35, {hl*32768 + r*4096}")
            p(f"buffer_load_dwordx4 v[{reg}:{reg+3}], v{M.vGB}, s[{srd}:{srd+3}], s35 offen offset:{db*1024} {aux}", tag=f"B{hl}")

def g_compute(p, M, pre_tile, order=(0, 1, 2, 3), PD=4, hooks=None, last_nouter=False, fin=None):
    hooks = hooks or {}
    seq = []
    for hl in order:
        if last_nouter and hl == order[-1]:
            for nb in range(9):
                for ks in range(4): seq.append((hl, ks, nb))
        else:
            for ks in range(4):
                for nb in range(9): seq.append((hl, ks, nb))
    first_use = set()
    started = set()
    def reads(f):
        hl, ks, nb = seq[f]
        if hl not in started:
            started.add(hl); pre_tile(hl)
        buf = M.vRING + 4*(f % M.NRING)
        off = ks*32*288 + nb*32
        p(f"ds_read_b64_tr_b16 v[{buf}:{buf+1}], v{M.vGA+hl} offset:{off}")
        p(f"ds_read_b64_tr_b16 v[{buf+2}:{buf+3}], v{M.vGA+hl} offset:{off + 16*288}")
    for f in range(PD): reads(f)
    pend = []
    for f in range(len(seq)):
        if f in hooks: hooks[f]()
        hl, ks, nb = seq[f]
        buf = M.vRING + 4*(f % M.NRING)
        for r in range(2):
            acc, _ = M.acc(nb, r)
            B = M.vB + ((hl*4 + ks)*2 + r)*4
            c = "0" if (hl, ks) == (order[0], 0) else acc
            p(f"v_mfma_f32_16x16x32_bf16 {acc}, v[{buf}:{buf+3}], v[{B}:{B+3}], {c}")
            if r == 0 and f + PD < len(seq): reads(f + PD)
        if last_nouter and fin is not None:
            if hl == order[-1] and ks == 3: pend.append((f + 2, nb))
            while pend and pend[0][0] <= f:
                fin(pend.pop(0)[1])
    if fin is not None:
        for _, nb in pend: fin(nb)

def g_store(p, M, srd, sW, fp32=False, aux=''):
    p(f"v_lshlrev_b32 v{M.vGS}, 4, v1")
    p(f"s_mul_i32 s29, s{sW}, {9*1024*(2 if fp32 else 1)}\nv_add_u32 v{M.vGS}, s29, v{M.vGS}")
    T = M.vRING
    for nb in range(9):
        regs = []
        for r in range(2):
            a, rl = M.acc(nb, r)
            if rl[0][0] == 'a':
                t = T + 8*(nb & 1) + 4*r + 16*0
                t = T + 16 + 4*r if False else T + 8*(nb & 1) + 4*r
                for k in range(4): p(f"v_accvgpr_read_b32 v{t+k}, {rl[k]}")
                rl = [f"v{t+k}" for k in range(4)]
            regs.append(rl)
        if fp32:
            for r in range(2):
                lo = int(regs[r][0][1:])
                p(f"s_mov_b32 s35, {(nb*2 + r)*1024}")
                p(f"buffer_store_dwordx4 v[{lo}:{lo+3}], v{M.vGS}, s[{srd}:{srd+3}], s35 offen {aux}", tag='P')
        else:
            o = M.vB + 4*nb
            for r in range(2):
                p(f"v_cvt_pk_bf16_f32 v{o+2*r}, {regs[r][0]}, {regs[r][1]}")
                p(f"v_cvt_pk_bf16_f32 v{o+2*r+1}, {regs[r][2]}, {regs[r][3]}")
            p(f"s_mov_b32 s35, {nb*1024}")
            p(f"buffer_store_dwordx4 v[{o}:{o+3}], v{M.vGS}, s[{srd}:{srd+3}], s35 offen {aux}", tag='P')

def g_store_setup(p, M, sW):
    p(f"v_lshlrev_b32 v{M.vGS}, 4, v1")
    p(f"s_mul_i32 s29, s{sW}, {9*1024}\nv_add_u32 v{M.vGS}, s29, v{M.vGS}")
def g_store_block(p, M, srd, nb, tmp, aux=''):
    regs = []
    for r in range(2):
        a, rl = M.acc(nb, r)
        if rl[0][0] == 'a':
            t = tmp + 4 + 4*r
            for k in range(4): p(f"v_accvgpr_read_b32 v{t+k}, {rl[k]}")
            rl = [f"v{t+k}" for k in range(4)]
        regs.append(rl)
    o = tmp
    for r in range(2):
        p(f"v_cvt_pk_bf16_f32 v{o+2*r}, {regs[r][0]}, {regs[r][1]}")
        p(f"v_cvt_pk_bf16_f32 v{o+2*r+1}, {regs[r][2]}, {regs[r][3]}")
    if nb*1024 < 4096:
        p(f"buffer_store_dwordx4 v[{o}:{o+3}], v{M.vGS}, s[{srd}:{srd+3}], 0 offen offset:{nb*1024} {aux}", tag='P')
    else:
        p(f"s_mov_b32 s35, {(nb//4)*4096}")
        p(f"buffer_store_dwordx4 v[{o}:{o+3}], v{M.vGS}, s[{srd}:{srd+3}], s35 offen offset:{(nb%4)*1024} {aux}", tag='P')

def wo_dma_setup(d, vbase, sW):
    for t in range(9):
        d(f"v_add_u32 v2, {64*t}, v1")
        d(f"v_mul_u32_u24 v3, 3641, v2\nv_lshrrev_b32 v3, 16, v3")
        d(f"v_mul_u32_u24 v4, 18, v3\nv_sub_u32 v4, v2, v4")
        d(f"v_mul_u32_u24 v3, 1152, v3\nv_lshl_add_u32 v{vbase+t}, v4, 4, v3")
    d(f"s_mul_i32 s29, s{sW}, {32*1152}")
    for t in range(9): d(f"v_add_u32 v{vbase+t}, s29, v{vbase+t}")

def wo_dma_issue(d, vbase, srd, sW, hl, ldsbase, aux=''):
    d(f"s_mov_b32 s35, {hl*128*1152}")
    d(f"s_mul_i32 s36, s{sW}, {9*1024}")
    for t in range(9):
        d(f"s_add_u32 m0, s36, {ldsbase + t*1024}")
        d(f"buffer_load_dwordx4 v{vbase+t}, s[{srd}:{srd+3}], s35 offen {aux} lds", tag=f"O{hl}")

def r_phase(p, wave_idx_sgpr, nwaves, srd_part, srd_out, sB, sH, fp32=False, aux=''):
    assert not fp32
    GS = 36*1024
    p("v_lshrrev_b32 v2, 5, v1\nv_and_b32 v3, 31, v1")
    p(f"v_mul_u32_u24 v2, {GS}, v2\nv_lshl_add_u32 v8, v3, 4, v2")
    p(f"s_lshr_b32 s29, s{sH}, 2\ns_mul_i32 s29, s29, 9")
    lists = [list(range(v, 9, nwaves)) for v in range(nwaves)]
    mx = max(len(x) for x in lists)
    for it in range(mx):
        lab = p.newlabel("L_rskip")
        last_ok = [v for v in range(nwaves) if len(lists[v]) > it]
        if len(last_ok) < nwaves:
            p(f"s_cmp_ge_u32 s{wave_idx_sgpr}, {len(last_ok)}\ns_cbranch_scc1 {lab}")
        p(f"s_add_u32 s30, s29, s{wave_idx_sgpr}\ns_add_u32 s30, s30, {it*nwaves}\ns_lshl_b32 s31, s30, 9")
        D = 16 + 16*it
        for s in range(4):
            p(f"s_add_u32 s35, s31, {2*s*GS}")
            p(f"buffer_load_dwordx4 v[{D+4*s}:{D+4*s+3}], v8, s[{srd_part}:{srd_part+3}], s35 offen {aux}", tag=f"R{it}")
        if len(last_ok) < nwaves:
            p.label(lab)
    p.wait_vm(0)
    for it in range(mx):
        lab = p.newlabel("L_rskip")
        last_ok = [v for v in range(nwaves) if len(lists[v]) > it]
        if len(last_ok) < nwaves:
            p.wait_vm(0)
            p(f"s_cmp_ge_u32 s{wave_idx_sgpr}, {len(last_ok)}\ns_cbranch_scc1 {lab}")
        D = 16 + 16*it
        A = 96
        for s in range(4):
            for k in range(4):
                r = D + 4*s + k
                if s == 0:
                    p(f"v_lshlrev_b32 v{A+2*k}, 16, v{r}\nv_and_b32 v{A+2*k+1}, 0xffff0000, v{r}")
                else:
                    p(f"v_lshlrev_b32 v104, 16, v{r}\nv_and_b32 v105, 0xffff0000, v{r}")
                    p(f"v_add_f32 v{A+2*k}, v{A+2*k}, v104\nv_add_f32 v{A+2*k+1}, v{A+2*k+1}, v105")
        for k in range(8):
            p(f"v_mov_b32 v{108+k}, v{A+k}")
        for k in range(8):
            p(f"v_permlane32_swap_b32 v{A+k}, v{108+k}")
        for k in range(8):
            p(f"v_add_f32 v{A+k}, v{A+k}, v{108+k}")
        for k in range(4):
            p(f"v_cvt_pk_bf16_f32 v{116+k}, v{A+2*k}, v{A+2*k+1}")
        p(f"s_add_u32 s30, s29, s{wave_idx_sgpr}\ns_add_u32 s30, s30, {it*nwaves}")
        p("s_lshr_b32 s31, s30, 1\ns_and_b32 s30, s30, 1")
        p("s_mul_hi_u32 s35, s31, 477218589\ns_mul_i32 s36, s35, 9\ns_sub_u32 s36, s31, s36")
        p(f"s_and_b32 s39, s{sH}, 3\ns_mul_i32 s39, s39, 288")
        p("s_mul_i32 s35, s35, 36864\ns_lshl_b32 s36, s36, 5\ns_add_u32 s35, s35, s36\ns_add_u32 s35, s35, s39\ns_lshl_b32 s30, s30, 4\ns_add_u32 s35, s35, s30")
        p("v_and_b32 v2, 15, v1\nv_bfe_u32 v3, v1, 4, 1")
        p("v_mul_u32_u24 v2, 1152, v2\nv_lshl_add_u32 v2, v3, 3, v2")
        p("s_mov_b32 exec_hi, 0")
        p(f"buffer_store_dwordx2 v[116:117], v2, s[{srd_out}:{srd_out+3}], s35 offen")
        p("s_add_u32 s35, s35, 18432")
        p(f"buffer_store_dwordx2 v[118:119], v2, s[{srd_out}:{srd_out+3}], s35 offen")
        p("s_mov_b32 exec_hi, -1")
        if len(last_ok) < nwaves:
            p.label(lab)


def r_phase8(p, sW8, srd_part, srd_out, sH, aux=''):
    GS = 36*1024
    p("v_lshrrev_b32 v2, 5, v1\nv_and_b32 v3, 31, v1")
    p(f"v_mul_u32_u24 v2, {GS}, v2\nv_lshl_add_u32 v8, v3, 4, v2")
    p(f"s_lshr_b32 s29, s{sH}, 2\ns_mul_i32 s29, s29, 9")
    def loads(it):
        p(f"s_add_u32 s30, s29, s{sW8}\ns_add_u32 s30, s30, {it*8}\ns_lshl_b32 s31, s30, 9")
        D = 16 + 16*it
        for s in range(4):
            p(f"s_add_u32 s35, s31, {2*s*GS}")
            p(f"buffer_load_dwordx4 v[{D+4*s}:{D+4*s+3}], v8, s[{srd_part}:{srd_part+3}], s35 offen {aux}", tag=f"R{it}")
    def proc(it):
        D = 16 + 16*it; A = 48
        for s in range(4):
            for k in range(4):
                r = D + 4*s + k
                if s == 0:
                    p(f"v_lshlrev_b32 v{A+2*k}, 16, v{r}\nv_and_b32 v{A+2*k+1}, 0xffff0000, v{r}")
                else:
                    p(f"v_dot2_f32_bf16 v{A+2*k}, v{r}, v9, v{A+2*k}\nv_dot2_f32_bf16 v{A+2*k+1}, v{r}, v10, v{A+2*k+1}")
        for k in range(8): p(f"v_mov_b32 v{56+k}, v{A+k}")
        for k in range(8): p(f"v_permlane32_swap_b32 v{A+k}, v{56+k}")
        for k in range(8): p(f"v_add_f32 v{A+k}, v{A+k}, v{56+k}")
        for k in range(4): p(f"v_cvt_pk_bf16_f32 v{64+k}, v{A+2*k}, v{A+2*k+1}")
        p(f"s_add_u32 s30, s29, s{sW8}\ns_add_u32 s30, s30, {it*8}")
        p("s_lshr_b32 s31, s30, 1\ns_and_b32 s30, s30, 1")
        p("s_mul_hi_u32 s35, s31, 477218589\ns_mul_i32 s36, s35, 9\ns_sub_u32 s36, s31, s36")
        p(f"s_and_b32 s39, s{sH}, 3\ns_mul_i32 s39, s39, 288")
        p("s_mul_i32 s35, s35, 36864\ns_lshl_b32 s36, s36, 5\ns_add_u32 s35, s35, s36\ns_add_u32 s35, s35, s39\ns_lshl_b32 s30, s30, 4\ns_add_u32 s35, s35, s30")
        p("s_mov_b32 exec_hi, 0")
        p(f"buffer_store_dwordx2 v[64:65], v11, s[{srd_out}:{srd_out+3}], s35 offen")
        p("s_add_u32 s35, s35, 18432")
        p(f"buffer_store_dwordx2 v[66:67], v11, s[{srd_out}:{srd_out+3}], s35 offen")
        p("s_mov_b32 exec_hi, -1")
    loads(0)
    lab = p.newlabel("L_r8a")
    p(f"s_cmp_lg_u32 s{sW8}, 0\ns_cbranch_scc1 {lab}")
    loads(1)
    p.label(lab)
    p("v_mov_b32 v9, 0x3f80\nv_mov_b32 v10, 0x3f800000")
    p("v_and_b32 v2, 15, v1\nv_bfe_u32 v3, v1, 4, 1")
    p("v_mul_u32_u24 v2, 1152, v2\nv_lshl_add_u32 v11, v3, 3, v2")
    p.wait_vm(0)
    proc(0)
    lab = p.newlabel("L_r8b")
    p(f"s_cmp_lg_u32 s{sW8}, 0\ns_cbranch_scc1 {lab}")
    proc(1)
    p.label(lab)


def r_phase9(p, sW8, srd_part, srd_out, sH, aux='', pre_wait=None, oaux=''):
    GS = 36*1024
    p(f"s_lshr_b32 s29, s{sH}, 2\ns_mul_i32 s29, s29, 288\ns_mul_i32 s30, s{sW8}, 36\ns_add_u32 s29, s29, s30")
    p("v_add_u32 v2, s29, v1")
    p("v_lshlrev_b32 v8, 4, v2")
    p("s_mov_b32 exec_lo, -1\ns_mov_b32 exec_hi, 15")
    if pre_wait: pre_wait()
    for g in range(8):
        p(f"s_mov_b32 s35, {g*GS}")
        p(f"buffer_load_dwordx4 v[{16+4*g}:{19+4*g}], v8, s[{srd_part}:{srd_part+3}], s35 offen {aux}", tag="R")
    p("v_lshrrev_b32 v3, 6, v2")
    p("v_mul_u32_u24 v4, 7282, v3\nv_lshrrev_b32 v4, 16, v4")
    p("v_mul_u32_u24 v5, 9, v4\nv_sub_u32 v5, v3, v5")
    p("v_and_b32 v6, 15, v2")
    p("v_bfe_u32 v7, v2, 4, 2")
    p("v_lshl_add_u32 v6, v4, 5, v6")
    p("v_mul_u32_u24 v6, 1152, v6")
    p("v_lshl_add_u32 v6, v5, 5, v6")
    p("v_lshl_add_u32 v11, v7, 3, v6")
    p(f"s_and_b32 s39, s{sH}, 3\ns_mul_i32 s39, s39, 288\ns_add_u32 s36, s39, 18432")
    p("v_mov_b32 v9, 0x3f80\nv_mov_b32 v10, 0x3f800000")
    A = 48
    for g in range(8):
        for k in range(4):
            r = 16 + 4*g + k
            if g == 0:
                p(f"v_lshlrev_b32 v{A+2*k}, 16, v{r}\nv_and_b32 v{A+2*k+1}, 0xffff0000, v{r}")
            else:
                p(f"v_dot2_f32_bf16 v{A+2*k}, v{r}, v9, v{A+2*k}\nv_dot2_f32_bf16 v{A+2*k+1}, v{r}, v10, v{A+2*k+1}")
    for k in range(4): p(f"v_cvt_pk_bf16_f32 v{56+k}, v{A+2*k}, v{A+2*k+1}")
    p(f"buffer_store_dwordx2 v[56:57], v11, s[{srd_out}:{srd_out+3}], s39 offen {oaux}")
    p(f"buffer_store_dwordx2 v[58:59], v11, s[{srd_out}:{srd_out+3}], s36 offen {oaux}")
    p("s_mov_b32 exec_hi, -1")


def r_phase10(p, sW8, srd_part, srd_out, sH, spin_max, aux='', sleep=1):
    GS = 36*1024
    p(f"s_lshr_b32 s29, s{sH}, 2\ns_mul_i32 s29, s29, 288\ns_mul_i32 s30, s{sW8}, 36\ns_add_u32 s29, s29, s30")
    p("v_add_u32 v2, s29, v1")
    p("v_lshlrev_b32 v8, 4, v2")
    p("s_mov_b32 exec_lo, -1\ns_mov_b32 exec_hi, 15")
    def loads():
        for g in range(8):
            p.raw(f"    s_mov_b32 s35, {g*GS}")
            p.raw(f"    buffer_load_dwordx4 v[{16+4*g}:{19+4*g}], v8, s[{srd_part}:{srd_part+3}], s35 offen {aux}")
    loads()
    p("v_lshrrev_b32 v3, 6, v2")
    p("v_mul_u32_u24 v4, 7282, v3\nv_lshrrev_b32 v4, 16, v4")
    p("v_mul_u32_u24 v5, 9, v4\nv_sub_u32 v5, v3, v5")
    p("v_and_b32 v6, 15, v2")
    p("v_bfe_u32 v7, v2, 4, 2")
    p("v_lshl_add_u32 v6, v4, 5, v6")
    p("v_mul_u32_u24 v6, 1152, v6")
    p("v_lshl_add_u32 v6, v5, 5, v6")
    p("v_lshl_add_u32 v11, v7, 3, v6")
    p(f"s_and_b32 s39, s{sH}, 3\ns_mul_i32 s39, s39, 288\ns_add_u32 s36, s39, 18432")
    p("v_mov_b32 v9, 0x3f80\nv_mov_b32 v10, 0x3f800000")
    p(f"s_mov_b32 s32, {spin_max}")
    lab = "L_rpoll"; done = "L_rpolld"
    p.label(lab)
    p.raw("    s_waitcnt vmcnt(0)")
    p("v_max3_u32 v12, v16, v17, v18")
    for i in range(19, 47, 2): p(f"v_max3_u32 v12, v12, v{i}, v{i+1}")
    p("v_max_u32 v12, v12, v47")
    p("v_cmp_eq_u32 vcc, -1, v12")
    p.nop(2)
    p(f"s_cbranch_vccz {done}")
    p(f"s_sub_u32 s32, s32, 1\ns_cmp_eq_u32 s32, 0\ns_cbranch_scc1 {done}")
    if sleep: p(f"s_sleep {sleep}")
    loads()
    p(f"s_branch {lab}")
    p.label(done)
    p.vmq = []
    A = 48
    for g in range(8):
        for k in range(4):
            r = 16 + 4*g + k
            if g == 0:
                p(f"v_lshlrev_b32 v{A+2*k}, 16, v{r}\nv_and_b32 v{A+2*k+1}, 0xffff0000, v{r}")
            else:
                p(f"v_dot2_f32_bf16 v{A+2*k}, v{r}, v9, v{A+2*k}\nv_dot2_f32_bf16 v{A+2*k+1}, v{r}, v10, v{A+2*k+1}")
    for k in range(4): p(f"v_cvt_pk_bf16_f32 v{56+k}, v{A+2*k}, v{A+2*k+1}")
    p(f"buffer_store_dwordx2 v[56:57], v11, s[{srd_out}:{srd_out+3}], s39 offen")
    p(f"buffer_store_dwordx2 v[58:59], v11, s[{srd_out}:{srd_out+3}], s36 offen")
    p("s_mov_b32 exec_hi, -1")
```

```python
from prog import *
from gr import *
import math, struct

NAME = "standalone__mha_block_cached__near_ridge_kernel"
SCALE_C = math.log2(math.e) / math.sqrt(128.0)
def f2u(x): return struct.unpack('<I', struct.pack('<f', x))[0]

sB, sH, sW = 3, 4, 5
SRD_X, SRD_WQ, SRD_K, SRD_V, SRD_O = 8, 12, 16, 20, 24
sROT = 28
sT0, sT1, sT2, sT3 = 29, 30, 31, 32
sLDSW = 33
sC = 34
sSOF = 35
sTHR = 37
sROLE = 38
sID = 39
SRD_WO, SRD_OG, SRD_P, SRD_FLG, SRD_OUT = 96, 12, 16, 20, 24
sJ = 6
sFAST = 7
sNON = 58
sXW = 59
sW8 = 57
sROTK = 86
sPK, sPV = 88, 90
sDUM = 87
sRDY = 56
WS_FLAG = 24 << 20
WOBASE = [73728, 0, 36864, 110592]
sPTR = 40
sSTAMP = 60

vKR = 16
vVR, vVR2 = 24, 28
vXR, vWR = 176, 188
vTA, vTB = 32, 36
vM, vL, vMC, vAL = 40, 41, 42, 43
vT = 44
vACC = 48
vQP = 112
vS = 144
vP = 176
vE = 192
vNEG = 208
vQF = 112
NARCH = 224
aFR = 0
aBF = 32
NVGPR = 256
dXG, dWG, dKG, dVG = 8, 12, 16, 20
dLW = 21
dWO = 22
dSTG = 32

TILE = 16384
NSLOT = 10
THR = 2.0 ** 30

def emit1(p, x):
    if callable(x): x()
    else: p(x)

class Gen:
    def __init__(self, stamps=False, hnt='nt', wnt='', rot=True, o_sc='', PD=4, force_rare=False,
                 plan=None, flyw=4, flyh=3, fly0=4, stage=(), qdrain=False, touch=True, samekv=False, qpd=2, wpair=True, fused=True, wo_at=(11, 14), spin_max=200000, dbgst=False, warm_at=10, notail=False, noflag=False, nowo=False, nofast=False, f1_at=20, poll_sleep=0, wgrp=2, plainB=False, sfx='', sent=False, rsleep=1, wont='', warm_offs=(0, 128, 256, 284), b_at=2, b_at2=12, f0_at=6, wo_stage_at=None, ofast='', psc=None, perwave=False, ldfirst=False, padto=0, nonce_late=False, spf_plan=None, endopt=False, rotk=0, fly_sched=None, oaux='', lazy_commit=False, warm2=False, pN=4, pgap=4, posflag=False, stall_at=None):
        self.p = Prog(); self.d = Prog()
        self.p.unsafe_stamps = True; self.d.unsafe_stamps = True
        self.stamps = stamps; self.hnt = hnt; self.wnt = wnt; self.rot = rot
        self.o_sc = o_sc; self.PD = PD
        self.nstamp = 0; self.dstamp = 0
        self.rare = []
        self.thr = 4.0 if force_rare else THR
        self.flyw = flyw; self.flyh = flyh; self.fly0 = fly0
        self.stage = list(stage)
        self.plan = plan
        self.qdrain = qdrain; self.qpd = qpd; self.wpair = wpair; self.touch = touch; self.samekv = samekv
        self.nsync = 0; self.sfx = sfx
        self.ring = set(range(5)); self.lowest = True; self.extra = {}
        self.notail = notail; self.noflag = noflag; self.nowo = nowo; self.nofast = nofast; self.f1_at = f1_at; self.poll_sleep = poll_sleep; self.wgrp = wgrp; self.plainB = plainB; self.sent = sent; self.rsleep = rsleep; self.wont = wont; self.warm_offs = warm_offs; self.b_at = b_at; self.b_at2 = b_at2; self.f0_at = f0_at; self.wo_stage_at = wo_stage_at; self.ofast = ofast; self.psc = psc; self.perwave = perwave; self.ldfirst = ldfirst; self.padto = padto; self.nonce_late = nonce_late; self.spf_plan = spf_plan; self.endopt = endopt; self.rotk = rotk; self.fly_sched = fly_sched or {}; self.oaux = oaux; self.lazy_commit = lazy_commit; self.warm2 = warm2; self.pN = pN; self.pgap = pgap; self.posflag = posflag; self.stall_at = stall_at
        self.dbgst = dbgst; self.warm_at = warm_at; self.wo_ready = False
        self.fused = fused; self.wo_at = wo_at; self.spin_max = spin_max; self.safe = 'sc1'
    def stamp(self):
        if self.stamps and self.nstamp < 18:
            self.p(f"s_memrealtime s[{sSTAMP+2*self.nstamp}:{sSTAMP+2*self.nstamp+1}]")
            self.nstamp += 1
    def stamp_d(self):
        if self.stamps and self.dstamp < 18:
            self.d(f"s_memrealtime s[{sSTAMP+2*self.dstamp}:{sSTAMP+2*self.dstamp+1}]")
            self.dstamp += 1
    def prologue_common(self, p):
        p(f"s_memrealtime s[{sSTAMP}:{sSTAMP+1}]") if self.stamps else None
        if self.padto: p("s_memrealtime s[92:93]")
        p(f"s_load_dwordx16 s[{sPTR}:{sPTR+15}], s[0:1], 0")
        p("s_cmp_ge_u32 s2, 256")
        p("s_cbranch_scc1 L_end")
        p(f"s_and_b32 s{sT0}, s2, 7\ns_lshr_b32 s{sT1}, s2, 3")
        p(f"s_lshl_b32 s{sH}, s{sT0}, 2\ns_and_b32 s{sT2}, s{sT1}, 3\ns_add_u32 s{sH}, s{sH}, s{sT2}\ns_lshr_b32 s{sB}, s{sT1}, 2")
        p("v_lshrrev_b32 v2, 6, v0\nv_and_b32 v1, 63, v0")
        p(f"v_readfirstlane_b32 s{sROLE}, v2")
        if self.rot:
            p(f"s_lshl_b32 s{sT2}, s{sT2}, 1\ns_add_u32 s{sROT}, s{sB}, s{sT2}\ns_cmp_ge_u32 s{sROT}, 9\ns_cselect_b32 s{sT3}, 9, 0\ns_sub_u32 s{sROT}, s{sROT}, s{sT3}")
        else:
            p(f"s_mov_b32 s{sROT}, 0")
        p(f"s_lshl_b32 s{sID}, s{sB}, 5\ns_add_u32 s{sID}, s{sID}, s{sH}")
        p(f"s_and_b32 s{sW}, s{sROLE}, 3")
        p(f"s_lshl_b32 s{sLDSW}, s{sW}, 12")
        if self.ldfirst:
            p(f"s_cmp_lt_u32 s{sROLE}, 4")
            p("s_cbranch_scc1 L_compute")
        else:
            p(f"s_cmp_ge_u32 s{sROLE}, 4")
            p("s_cbranch_scc1 L_loader")
    def prologue_d(self):
        p = self.d
        l = 'v1'
        p(f"v_lshrrev_b32 v2, 3, {l}")
        p(f"s_lshl_b32 s{sT0}, s{sW}, 5")
        p(f"v_add_u32 v2, s{sT0}, v2")
        p(f"v_mul_u32_u24 v2, 1152, v2")
        p(f"v_lshrrev_b32 v3, 4, {l}")
        p(f"v_and_b32 v4, 7, {l}")
        p(f"v_xor_b32 v5, v3, v4\nv_lshl_add_u32 v{dXG}, v5, 4, v2")
        p(f"v_xor_b32 v5, 4, v5\nv_lshl_add_u32 v5, v5, 4, v2")
        p(f"v_add_u32 v{dXG+1}, {8192}, v5")
        p(f"v_add_u32 v{dXG+2}, {16384}, v{dXG}")
        p(f"v_add_u32 v{dXG+3}, {24576}, v5")
        p(f"s_lshl_b32 s{sT0}, s{sW}, 4")
        p(f"v_add_u32 v2, s{sT0}, v3")
        p(f"v_and_b32 v4, 15, {l}")
        p(f"v_lshlrev_b32 v5, 2, v3")
        p(f"v_xor_b32 v5, v5, v4")
        p(f"v_lshlrev_b32 v5, 4, v5")
        p(f"v_lshl_add_u32 v{dWG}, v2, 13, v5")
        for j in range(1, 4):
            p(f"v_add_u32 v{dWG+j}, {j*(4*8192-1024)}, v{dWG}")
        p(f"v_lshlrev_b32 v6, 8, v2")
        p(f"v_add_u32 v{dVG}, v6, v5")
        p(f"v_xor_b32 v5, v3, v4")
        for j in range(4):
            if j: p(f"v_xor_b32 v7, {4*j}, v5\nv_lshl_add_u32 v{dKG+j}, v7, 4, v6")
            else: p(f"v_lshl_add_u32 v{dKG}, v5, 4, v6")
        p(f"v_lshlrev_b32 v{dLW}, 4, {l}")
        p(f"v_add_u32 v{dLW}, s{sLDSW}, v{dLW}")
        if self.rotk == 1:
            p(f"s_and_b32 s{sT0}, s{sH}, 3\ns_lshl_b32 s{sT0}, s{sT0}, 1\ns_add_u32 s{sT0}, s{sT0}, s{sB}\ns_lshr_b32 s{sT1}, s{sH}, 2\ns_add_u32 s{sROTK}, s{sT0}, s{sT1}")
        elif self.rotk == 2:
            p(f"s_add_u32 s{sROTK}, s{sB}, s{sH}")
        elif self.rotk == 3:
            p(f"s_lshr_b32 s{sROTK}, s{sID}, 0\ns_mul_i32 s{sROTK}, s{sROTK}, 3")
        p.wait_lgkm(0)
        self.srds(p)
    def srds(self, p, which="XWKVO"):
        X, K, V, WQ, WO, OUT, DBG, WS = [sPTR + 2*i for i in range(8)]
        if 'X' in which:
            p(f"s_mul_i32 s{sT0}, s{sB}, 147456")
            p(f"s_add_u32 s{SRD_X}, s{X}, s{sT0}\ns_addc_u32 s{SRD_X+1}, s{X+1}, 0\ns_mov_b32 s{SRD_X+2}, 147456\ns_mov_b32 s{SRD_X+3}, 0x20000")
        if 'W' in which:
            p(f"s_lshl_b32 s{sT0}, s{sH}, 8")
            p(f"s_add_u32 s{SRD_WQ}, s{WQ}, s{sT0}\ns_addc_u32 s{SRD_WQ+1}, s{WQ+1}, 0\ns_sub_u32 s{SRD_WQ+2}, 4718592, s{sT0}\ns_mov_b32 s{SRD_WQ+3}, 0x20000")
        p(f"s_lshl_b32 s{sT0}, s{sB}, 5\ns_add_u32 s{sT0}, s{sT0}, s{sH}")
        if 'K' in which:
            p(f"s_lshl_b32 s{sT1}, s{sT0}, 17")
            if self.samekv: p(f"s_mov_b32 s{sT1}, 0")
            p(f"s_add_u32 s{SRD_K}, s{K}, s{sT1}\ns_addc_u32 s{SRD_K+1}, s{K+1}, 0\ns_mov_b32 s{SRD_K+2}, 131072\ns_mov_b32 s{SRD_K+3}, 0x20000")
            p(f"s_add_u32 s{SRD_V}, s{V}, s{sT1}\ns_addc_u32 s{SRD_V+1}, s{V+1}, 0\ns_mov_b32 s{SRD_V+2}, 131072\ns_mov_b32 s{SRD_V+3}, 0x20000")
        if 'O' in which:
            p(f"s_lshl_b32 s{sT1}, s{sT0}, 15")
            p(f"s_add_u32 s{SRD_O}, s{WS}, s{sT1}\ns_addc_u32 s{SRD_O+1}, s{WS+1}, 0\ns_mov_b32 s{SRD_O+2}, 32768\ns_mov_b32 s{SRD_O+3}, 0x20000")
    def prologue_c(self):
        p = self.p
        l = 'v1'
        p(f"s_mov_b32 s{sC}, {f2u(SCALE_C):#x}")
        p(f"s_mov_b32 s{sTHR}, {f2u(self.thr):#x}")
        p(f"v_and_b32 v2, 31, {l}")
        p(f"v_lshrrev_b32 v3, 5, {l}")
        p(f"v_bfe_u32 v4, v2, 1, 3")
        p(f"v_xor_b32 v4, v4, v3")
        p(f"v_lshlrev_b32 v4, 4, v4")
        p(f"v_lshlrev_b32 v5, 7, v2")
        p(f"v_add_u32 v5, s{sLDSW}, v5")
        for s in range(4):
            p(f"v_xor_b32 v6, {32*s}, v4")
            p(f"v_add_u32 v{vXR+s}, v5, v6")
            p(f"v_add_u32 v{vXR+4+s}, 65536, v{vXR+s}\nv_add_u32 v{vXR+8+s}, 131072, v{vXR+s}")
        p(f"v_and_b32 v4, 15, v2")
        p(f"v_xor_b32 v4, v4, v3")
        p(f"v_lshlrev_b32 v4, 4, v4")
        p(f"v_lshlrev_b32 v5, 8, v2")
        for ks in range(8):
            p(f"v_xor_b32 v6, {32*ks}, v4")
            p(f"v_add_u32 v{vKR+ks}, v5, v6")
        p(f"v_bfe_u32 v2, {l}, 4, 1")
        p(f"v_bfe_u32 v4, {l}, 2, 2")
        p(f"v_and_b32 v5, 3, {l}")
        p(f"v_and_b32 v6, 1, v5\nv_lshlrev_b32 v6, 1, v6\nv_lshrrev_b32 v7, 1, v5\nv_or_b32 v6, v6, v7")
        p(f"v_lshl_add_u32 v6, v2, 2, v6")
        p(f"v_lshlrev_b32 v6, 3, v6")
        p(f"v_lshl_add_u32 v7, v3, 3, v4")
        p(f"v_lshl_add_u32 v6, v7, 8, v6")
        for db in range(4):
            p(f"v_xor_b32 v7, {db}, v4")
            p(f"v_lshl_add_u32 v{vWR+db}, v7, 6, v6")
            p(f"v_add_u32 v{vWR+4+db}, 65536, v{vWR+db}\nv_add_u32 v{vWR+8+db}, 131072, v{vWR+db}")
        p(f"v_lshl_add_u32 v6, v2, 2, v5")
        p(f"v_lshlrev_b32 v6, 3, v6")
        p(f"v_lshl_add_u32 v7, v3, 2, v4")
        p(f"v_lshl_add_u32 v6, v7, 8, v6")
        for db in range(4):
            p(f"v_xor_b32 v7, {db}, v4")
            p(f"v_lshl_add_u32 v{vVR+db}, v7, 6, v6")
            p(f"v_add_u32 v{vVR2+db}, 131072, v{vVR+db}\nv_add_u32 v{vVR+db}, 65536, v{vVR+db}")
        p.wait_lgkm(0)
        self.srds(p, "O")
    def d_issue(self, name):
        d = self.d
        kind, idx = name[0], int(name[1:])
        staged = name in self.stage
        if staged:
            r = self.stgfree.pop(0); self.stg[name] = r
        else:
            slot = self.alloc(name); self.slot[name] = slot
        self.inflight.append(name); self.issued_at[name] = self.cur_k
        if kind in 'XW':
            d(f"s_add_u32 s{sT0}, s{sROT}, {idx}\ns_cmp_ge_u32 s{sT0}, 9\ns_cselect_b32 s{sT1}, 9, 0\ns_sub_u32 s{sT0}, s{sT0}, s{sT1}")
            d(f"s_lshl_b32 s{sSOF}, s{sT0}, {7 if kind == 'X' else 19}")
            srd, nt = (SRD_X, self.wnt) if kind == 'X' else (SRD_WQ, self.wnt)
            vbs = [(dXG if kind == 'X' else dWG) + j for j in range(4)]
        else:
            if self.rotk:
                d(f"s_add_u32 s{sSOF}, s{sROTK}, {idx}\ns_and_b32 s{sSOF}, s{sSOF}, 7\ns_lshl_b32 s{sSOF}, s{sSOF}, 14")
            else:
                d(f"s_mov_b32 s{sSOF}, {idx*TILE}")
            srd, nt = (SRD_K, self.hnt) if kind == 'K' else (SRD_V, self.hnt)
            vbs = [dKG + j for j in range(4)] if kind == 'K' else [dVG]*4
        if staged:
            for j in range(4):
                d(f"buffer_load_dwordx4 v[{r+4*j}:{r+4*j+3}], v{vbs[j]}, s[{srd}:{srd+3}], s{sSOF} offen offset:{j*1024} {nt}", tag=name)
        else:
            d(f"s_add_u32 m0, s{sLDSW}, {slot*TILE}")
            for j in range(4):
                d(f"buffer_load_dwordx4 v{vbs[j]}, s[{srd}:{srd+3}], s{sSOF} offen offset:{j*1024} {nt} lds", tag=name)
    VSLOT = [8, 9, 4, 5, 6, 7, 8, 9]
    def fixed(self, name):
        k, i = name[0], int(name[1:])
        if k == 'X': return (2*i) % 10
        if k == 'W': return (2*i + 1) % 10
        if k == 'K': return i % 4
        return self.VSLOT[i]
    def can_alloc(self, name): return self.fixed(name) in self.free
    def alloc(self, name):
        x = self.fixed(name); assert x in self.free, (name, x, self.free)
        self.free.remove(x); return x
    WO_SLOTS = {0: (4, 5, 6), 1: (0, 1, 2), 2: (3,), 3: (7, 8)}
    def try_wo(self):
        if self.nowo: return
        if any(t[0] in 'KV' for t in self.stream): return
        lim = 4 if self.wo_stage_at else 3
        while self.wo_next < lim and all(x in self.free for x in self.WO_SLOTS[self.wo_next]):
            for x in self.WO_SLOTS[self.wo_next]: self.free.remove(x)
            if self.wo_next in self.wo_staged: self.wo_commit(self.wo_next)
            else: self.wo_issue(self.wo_next)
            self.wo_next += 1
    def d_commit(self, name):
        d = self.d
        slot = self.alloc(name); self.slot[name] = slot
        r = self.stg.pop(name)
        base = slot*TILE
        if base + 4096 > 65536:
            d(f"v_add_u32 v2, {base}, v{dLW}"); a = 'v2'; base = 0
        else: a = f"v{dLW}"
        for j in range(4):
            d(f"ds_write_b128 {a}, v[{r+4*j}:{r+4*j+3}] offset:{base + j*1024}")
        self.stgfree.append(r)
        self.committed.append(name)
        if name in self.inflight:
            self.inflight = self.inflight[self.inflight.index(name)+1:]
    def pump(self, k):
        self.cur_k = k
        if self.plan is not None and k in self.plan:
            for op in self.plan[k]:
                if op[0] == '!': self.d_commit(op[1:])
                else:
                    assert self.stream[0] == op, (self.stream[0], op)
                    self.d_issue(self.stream.pop(0))
            for fn in self.extra.get(k, []): fn()
            return
        if self.plan is not None and k <= max(self.plan): return
        while self.stream:
            nxt = self.stream[0]
            if len(self.inflight) >= self.fly_sched.get(k, self.flyh): break
            if nxt in self.stage:
                if not self.stgfree: break
            elif not self.can_alloc(nxt): break
            self.d_issue(self.stream.pop(0))
        for t in [t for t in self.order if t in self.stg]:
            if k - self.issued_at[t] >= 2 and self.can_alloc(t): self.d_commit(t)
        for fn in self.extra.get(k, []): fn()
        self.try_wo()
    def sync(self, need, release, drain=False):
        p, d = self.p, self.d
        if drain: p.wait_lgkm(0)
        for n in need:
            if n in self.stg: self.d_commit(n)
            assert n in self.slot, n
        d.wait_vm_tag(need)
        if any(n in self.committed for n in need) or (self.committed and not self.lazy_commit):
            d.wait_lgkm(0); self.committed = []
        last = max([self.inflight.index(n) if n in self.inflight else -1 for n in need] + [-1])
        self.inflight = self.inflight[last+1:]
        if self.stamps == 'arr' and self.nsync < 12:
            self.stamp(); self.stamp_d()
        if self.stamps == 'arr2' and self.nsync >= 7:
            self.stamp(); self.stamp_d()
        if self.stamps == 'arr3' and 10 <= self.nsync <= 16:
            self.stamp(); self.stamp_d()
        p("s_barrier"); d("s_barrier")
        if self.stamps == 'd': self.stamp_d()
        for r in release:
            self.free.append(self.slot.pop(r))
        self.pump(self.nsync)
        if self.stamps == 'arr3' and 10 <= self.nsync <= 16: self.stamp_d()
        self.nsync += 1
    def win(self, base, slot):
        w = slot // 4
        return base + 4*w, (slot % 4) * TILE
    def q_read_list(self, n):
        c, s = n // 4, n % 4
        xb, xo = self.xa; wb, wo = self.wa
        A = vQF + 20*(n % 3); B = A + 16
        r = [f"ds_read_b128 v[{B}:{B+3}], v{xb+s} offset:{xo}"]
        for db in range(4):
            r.append(f"ds_read_b64_tr_b16 v[{A+4*db}:{A+4*db+1}], v{wb+db} offset:{wo + s*4096}")
            r.append(f"ds_read_b64_tr_b16 v[{A+4*db+2}:{A+4*db+3}], v{wb+db} offset:{wo + s*4096 + 1024}")
        return r
    def q_sync(self, c):
        if self.qdrain:
            rel = [f"X{c-1}", f"W{c-1}"] if c > 0 else []
            self.sync([f"X{c}", f"W{c}"], rel, drain=True)
        else:
            rel = [f"X{c-2}", f"W{c-2}"] if c > 1 else []
            self.sync([f"X{c}", f"W{c}"], rel)
        if self.stamps == 'q': self.stamp()
        if not self.noflag and not self.nonce_late and c == 3: self.nonce_b()
        if not self.noflag and c == 5 and self.sent: self.p.wait_vm(0)
        if not self.noflag and not self.nonce_late and c == 6: self.nonce_c()
        self.xa = self.win(vXR, self.slot[f"X{c}"]); self.wa = self.win(vWR, self.slot[f"W{c}"])
    def q_phase(self):
        p = self.p
        QD = self.qpd
        self.q_sync(0)
        self.stamp()
        for n in range(QD):
            for r in self.q_read_list(n): p(r)
        for n in range(36):
            nxt = []
            if n + QD < 36:
                if (n + QD) % 4 == 0: self.q_sync((n + QD) // 4)
                nxt = self.q_read_list(n + QD)
            A = vQF + 20*(n % 3); B = A + 16
            rd = {0: nxt[0:3], 1: nxt[3:5], 2: nxt[5:7], 3: nxt[7:9]} if nxt else {}
            for db in range(4):
                acc = f"v[{vACC+16*db}:{vACC+16*db+15}]"
                c = "0" if n == 0 else acc
                if db % 2 == 0 and self.wpair:
                    p.need([f"v{r}" for r in range(B, B+4)] + [f"v{r}" for r in range(A+4*db, A+4*db+8)])
                p(f"v_mfma_f32_32x32x16_bf16 {acc}, v[{A+4*db}:{A+4*db+3}], v[{B}:{B+3}], {c}")
                for r in rd.get(db, []): p(r)
    def q_pack_list(self):
        out = []
        for db in range(4):
            for i in range(16):
                out.append(f"v_mul_f32 v{vACC+16*db+i}, s{sC}, v{vACC+16*db+i}")
            for sp in range(2):
                for i in range(4):
                    r = vACC + 16*db + 8*sp + 2*i
                    out.append(f"v_cvt_pk_bf16_f32 v{vQP + 4*(2*db+sp) + i}, v{r}, v{r+1}")
        return out
    def kread(self, f, j, ks):
        b, o = self.kaddr[j // 2]
        buf = aFR + 4*(f % 8)
        return [f"ds_read_b128 a[{buf}:{buf+3}], v{b+ks} offset:{o + (j % 2)*8192}"]
    def vread(self, f, j, m):
        b, o = self.vaddr[j // 2]
        tt, db = m // 4, m % 4
        s = 2*(j % 2) + tt
        buf = aFR + 4*(f % 8)
        return [f"ds_read_b64_tr_b16 a[{buf}:{buf+1}], v{b+db} offset:{o + s*4096}",
                f"ds_read_b64_tr_b16 a[{buf+2}:{buf+3}], v{b+db} offset:{o + s*4096 + 2048}"]
    def sm_core(self, j):
        S = vS + 16*(j & 1); P = vP + 8*(j & 1); E = vE
        T0, T1 = vT, vT + 1
        L = []
        def ex(i): L.append((f"v_exp_f32 v{E+i}, v{S+i}", 2))
        def adds(g):
            i = 4*g
            if g == 0:
                L.append((f"v_add_f32 v{T0}, v{E}, v{E+1}", 1)); L.append((f"v_add_f32 v{T1}, v{E+2}, v{E+3}", 1))
            else:
                L.append((f"v_add_f32 v{T0}, v{T0}, v{E+i}", 1)); L.append((f"v_add_f32 v{T1}, v{T1}, v{E+i+1}", 1))
                L.append((f"v_add_f32 v{T0}, v{T0}, v{E+i+2}", 1)); L.append((f"v_add_f32 v{T1}, v{T1}, v{E+i+3}", 1))
        def cvts(g):
            i = 4*g
            L.append((f"v_cvt_pk_bf16_f32 v{P+2*g}, v{E+i}, v{E+i+1}", 1))
            L.append((f"v_cvt_pk_bf16_f32 v{P+2*g+1}, v{E+i+2}, v{E+i+3}", 1))
        for g in range(4):
            for i in range(4): ex(4*g + i)
            if g >= 1:
                adds(g - 1)
                if g <= 2: cvts(g - 1)
        adds(3)
        L.append((f"v_add_f32 v{T0}, v{T0}, v{T1}", 1))
        L.append((f"v_cmp_nge_f32 vcc, s{sTHR}, v{T0}", 1))
        cvts(2); cvts(3)
        return L
    def rowmax(self, p, S, dst, tmp):
        p(f"v_max3_f32 v{dst}, v{S}, v{S+1}, v{S+2}")
        p(f"v_max3_f32 v{tmp}, v{S+3}, v{S+4}, v{S+5}")
        for k, i in enumerate(range(6, 16, 2)):
            d = dst if k % 2 == 0 else tmp
            p(f"v_max3_f32 v{d}, v{d}, v{S+i}, v{S+i+1}")
        p(f"v_max_f32 v{dst}, v{dst}, v{tmp}")
        p(f"v_mov_b32 v{tmp}, v{dst}")
        p(f"v_permlane32_swap_b32 v{dst}, v{tmp}")
        p(f"v_max_f32 v{dst}, v{dst}, v{tmp}")
    def check(self, j):
        p = self.p
        p(f"s_cbranch_vccnz L_rare{j}")
        p.label(f"L_back{j}")
        if j == 0: p(f"v_mov_b32 v{vL}, v{vT}")
        else: p(f"v_add_f32 v{vL}, v{vL}, v{vT}")
        self.rare.append(j)
    def emit_rare(self):
        out = []
        for j in self.rare:
            q = Prog()
            q.label(f"L_rare{j}")
            q.nop(16)
            S = vS + 16*(j & 1); S2 = vS + 16*((j + 1) & 1)
            T2, T3 = vT + 2, vT + 3
            self.rowmax(q, S, T2, T3)
            q(f"v_max_f32 v{T2}, 0, v{T2}")
            q(f"v_exp_f32 v{vAL}, -v{T2}")
            for i in range(16): q(f"v_sub_f32 v{S+i}, v{S+i}, v{T2}")
            if j + 1 < 16:
                for i in range(16): q(f"v_sub_f32 v{S2+i}, v{S2+i}, v{T2}")
            for i in range(16): q(f"v_sub_f32 v{vNEG+i}, v{vNEG+i}, v{T2}")
            if j > 0:
                q(f"v_mul_f32 v{vL}, v{vAL}, v{vL}")
                for i in range(64): q(f"v_mul_f32 v{vACC+i}, v{vAL}, v{vACC+i}")
            if self.endopt and j == 15:
                P14 = vP + 8*(14 & 1)
                for i in range(8):
                    q(f"v_lshlrev_b32 v{vE}, 16, v{P14+i}\nv_and_b32 v{vE+1}, 0xffff0000, v{P14+i}")
                    q(f"v_mul_f32 v{vE}, v{vAL}, v{vE}\nv_mul_f32 v{vE+1}, v{vAL}, v{vE+1}")
                    q(f"v_cvt_pk_bf16_f32 v{P14+i}, v{vE}, v{vE+1}")
            for t, _ in self.sm_core(j): q(t)
            q.nop(4)
            q(f"s_branch L_back{j}")
            out += q.out
        return out
    def attention(self):
        p = self.p; PD = self.PD
        NB = 16
        self.kaddr = {}; self.vaddr = {}
        def setk(t):
            sl = self.slot[f"K{t}"]; assert sl < 4
            self.kaddr[t] = (vKR, sl*TILE); return []
        def setv(t):
            sl = self.slot[f"V{t}"]; assert sl >= 4
            self.vaddr[t] = (vVR, (sl-4)*TILE) if sl < 8 else (vVR2, (sl-8)*TILE); return []
        seq = [('K', 0, ks) for ks in range(8)]
        bounds = {}
        for j in range(NB):
            st = len(seq)
            if j + 1 < NB: seq += [('K', j + 1, ks) for ks in range(8)]
            if j >= 1 and not (self.endopt and j == NB - 1): seq += [('V', j - 1, m) for m in range(8)]
            bounds[j] = (st, len(seq))
        st = len(seq)
        if self.endopt:
            for db in range(4): seq += [('V', 14, db), ('V', 14, 4 + db), ('V', 15, db), ('V', 15, 4 + db)]
        else:
            seq += [('V', NB - 1, m) for m in range(8)]
        bounds[NB] = (st, len(seq))
        fin0 = st
        def mf_text(f):
            kind, j, m = seq[f]
            buf = aFR + 4*(f % 8)
            if kind == 'K':
                acc = f"v[{vS+16*(j&1)}:{vS+16*(j&1)+15}]"
                c = acc if m > 0 else ("0" if j == 0 else f"v[{vNEG}:{vNEG+15}]")
                return f"v_mfma_f32_32x32x16_bf16 {acc}, a[{buf}:{buf+3}], v[{vQP+4*m}:{vQP+4*m+3}], {c}"
            tt, db = m // 4, m % 4
            acc = f"v[{vACC+16*db}:{vACC+16*db+15}]"
            c = "0" if (j == 0 and tt == 0) else acc
            P = vP + 8*(j & 1) + 4*tt
            return f"v_mfma_f32_32x32x16_bf16 {acc}, a[{buf}:{buf+3}], v[{P}:{P+3}], {c}"
        def tile_of(f):
            kind, j, m = seq[f]; return f"{kind}{j//2}"
        first = {}; lastf = {}
        for f in range(len(seq)):
            first.setdefault(tile_of(f), f); lastf[tile_of(f)] = f
        done_tiles = ["X7", "W7", "X8", "W8"]
        synced = set()
        def do_reads(f):
            t = tile_of(f)
            if first[t] == f and t not in synced:
                need = [t]
                for t2, f2 in first.items():
                    if t2 not in synced and t2 != t and f < f2 <= f + 8: need.append(t2)
                rel = [x for x in self.slot if x in lastf and lastf[x] <= f - PD - 1 and f - PD - 1 >= 0] + [x for x in done_tiles if x in self.slot]
                self.sync(need, rel)
                for n in need:
                    synced.add(n)
                    for i in (setk(int(n[1:])) if n[0] == 'K' else setv(int(n[1:]))): p(i)
                if self.stamps == 'a': self.stamp()
            kind, j, m = seq[f]
            for x in (self.kread(f, j, m) if kind == 'K' else self.vread(f, j, m)): p(x)
        for f in range(PD): do_reads(f)
        for t in self.q_pack_list(): p(t)
        def run(f0, f1, fillers, rdlim=None):
            rdlim = len(seq) if rdlim is None else rdlim
            n = f1 - f0
            tot = sum(c for _, c in fillers); fi = 0; acc = 0.0
            for f in range(f0, f1):
                if f % self.wgrp == 0:
                    p.need([f"a{aFR + 4*(g % 8) + r}" for g in range(f, f + self.wgrp) for r in range(4)])
                p(mf_text(f))
                if f + PD < rdlim: do_reads(f + PD)
                target = tot * (f - f0 + 1) / n
                while fi < len(fillers) and acc + fillers[fi][1]*0.5 <= target + 1e-9:
                    emit1(p, fillers[fi][0]); acc += fillers[fi][1]; fi += 1
            while fi < len(fillers):
                emit1(p, fillers[fi][0]); fi += 1
        run(0, 8, [])
        self.rowmax(p, vS, vM, vT + 3)
        p(f"v_sub_f32 v{vNEG}, 0, v{vM}")
        for i in range(1, 16): p(f"v_mov_b32 v{vNEG+i}, v{vNEG}")
        for i in range(16): p(f"v_sub_f32 v{vS+i}, v{vS+i}, v{vM}")
        for j in range(NB):
            f0, f1 = bounds[j]
            if self.endopt and j == NB - 1:
                for t, _ in self.sm_core(j): p(t)
            else:
                run(f0, f1, self.sm_core(j), rdlim=(fin0 if self.endopt else None))
            self.check(j)
            if self.nonce_late and not self.noflag:
                if j == 1: self.nonce_b()
                if j == 3: self.nonce_c()
            if j == 10 and not self.noflag: self.decide_a()
            if j == 13 and not self.noflag: self.decide_b()
            if self.stamps == 'a' and j % 2 == 1: self.stamp()
        if not self.endopt:
            run(*bounds[NB], [])
            return
        self.epi_pre()
        for i in range(4): p(f"v_mov_b32 v{vQP+i}, v{vVR2+i}")
        for f in range(fin0, fin0 + PD):
            do_reads(f)
            if f == fin0:
                assert self.slot["V7"] >= 8
                self.vaddr[7] = (vQP, self.vaddr[7][1])
        pend = []
        for f in range(fin0, len(seq)):
            if (f - fin0) % self.wgrp == 0:
                p.need([f"a{aFR + 4*(g % 8) + r}" for g in range(f, f + self.wgrp) for r in range(4)])
            p(mf_text(f))
            if f + PD < len(seq): do_reads(f + PD)
            i = f - fin0
            if i % 4 == 0 and i >= 4: pend = self.epi_db(i // 4 - 1)
            take = -(-len(pend) // (4 - i % 4)) if pend else 0
            for t in pend[:take]: emit1(p, t)
            pend = pend[take:]
        for t in self.epi_db(3): emit1(p, t)
    def flag_srd(self, p):
        WS = sPTR + 14
        p(f"s_add_u32 s{SRD_FLG}, s{WS}, {WS_FLAG}\ns_addc_u32 s{SRD_FLG+1}, s{WS+1}, 0\ns_mov_b32 s{SRD_FLG+2}, 98304\ns_mov_b32 s{SRD_FLG+3}, 0x20000")
    def nonce_a(self):
        p = self.p
        DBG = sPTR + 12
        lab = "L_nononce"
        self.flag_srd(p)
        p(f"s_getreg_b32 s{sXW}, hwreg(HW_REG_XCC_ID)\ns_and_b32 s{sXW}, s{sXW}, 0xff")
        p(f"s_mov_b32 s{sFAST}, 0\ns_mov_b32 s{sRDY}, 0")
        if self.sent:
            WS = sPTR + 14
            p(f"s_and_b32 s{sJ}, s{sH}, 3\ns_lshr_b32 s{sT0}, s{sH}, 2")
            p(f"s_lshl_b32 s{sT1}, s{sB}, 2\ns_add_u32 s{sT1}, s{sT1}, s{sJ}\ns_lshl_b32 s{sT1}, s{sT1}, 3\ns_add_u32 s{sT1}, s{sT1}, s{sT0}\ns_mul_i32 s{sT1}, s{sT1}, 36864\ns_add_u32 s{sT1}, s{sT1}, {WS_PART}")
            p(f"s_add_u32 s{SRD_P}, s{WS}, s{sT1}\ns_addc_u32 s{SRD_P+1}, s{WS+1}, 0\ns_mov_b32 s{SRD_P+2}, 36864\ns_mov_b32 s{SRD_P+3}, 0x20000")
            p(f"v_lshlrev_b32 v2, 4, v1\ns_mul_i32 s{sT0}, s{sW}, {9*1024}\nv_add_u32 v2, s{sT0}, v2")
            for r in range(4): p(f"v_mov_b32 v{4+r}, -1")
            for nb in range(9):
                p(f"s_mov_b32 s35, {(nb//4)*4096}")
                p(f"buffer_store_dwordx4 v[4:7], v2, s[{SRD_P}:{SRD_P+3}], s35 offen offset:{(nb%4)*1024} sc1", tag='fill')
        p(f"s_or_b32 s{sT0}, s{sID}, s{sW}\ns_cmp_lg_u32 s{sT0}, 0\ns_cbranch_scc1 {lab}")
        p.raw("    s_memrealtime s[30:31]")
        p.raw("    s_waitcnt lgkmcnt(0)")
        p("s_or_b32 s30, s30, 1")
        p("v_mov_b32 v2, 4\nv_mov_b32 v3, s30")
        p("s_mov_b64 exec, 1")
        p.raw(f"    global_store_dword v2, v3, s[{DBG}:{DBG+1}] sc1")
        p("s_mov_b64 exec, -1")
        p.label(lab)
        p.nop(2)
    def nonce_b(self):
        p = self.p
        DBG = sPTR + 12
        p("v_mov_b32 v4, 4")
        p(f"global_load_dword v2, v4, s[{DBG}:{DBG+1}]", tag='non')
    def nonce_c(self):
        p = self.p
        DBG = sPTR + 12
        lab = "L_nonok"; lp = "L_nonpoll"
        p(f"v_readfirstlane_b32 s{sNON}, v2")
        p(f"s_cmp_lg_u32 s{sNON}, 0\ns_cbranch_scc1 {lab}")
        p(f"s_mov_b32 s{sT3}, {self.spin_max}")
        p.label(lp)
        p.raw(f"    global_load_dword v2, v4, s[{DBG}:{DBG+1}] sc1")
        p.raw("    s_waitcnt vmcnt(0)")
        p.raw(f"    v_readfirstlane_b32 s{sNON}, v2")
        p.raw("    s_nop 3")
        p(f"s_cmp_lg_u32 s{sNON}, 0\ns_cbranch_scc1 {lab}")
        p(f"s_sub_u32 s{sT3}, s{sT3}, 1\ns_cmp_lg_u32 s{sT3}, 0\ns_cbranch_scc1 {lp}")
        p.label(lab)
        p.nop(4)
        l2 = "L_noxw"
        p(f"s_cmp_lg_u32 s{sW}, 0\ns_cbranch_scc1 {l2}")
        p(f"s_lshl_b32 s{sT0}, s{sID}, 7\ns_add_u32 s{sT0}, s{sT0}, 65536")
        p(f"v_mov_b32 v2, s{sNON}\nv_mov_b32 v3, s{sXW}")
        p.raw(f"    buffer_store_dwordx2 v[2:3], off, s[{SRD_FLG}:{SRD_FLG+3}], s{sT0} sc1")
        p.label(l2)
        p.nop(2)
    def decide_a(self):
        p = self.p
        p(f"s_and_b32 s{sT0}, s{sID}, {~3 & 0xffffffff:#x}\nv_and_b32 v4, 3, v1\nv_add_u32 v4, s{sT0}, v4\nv_lshlrev_b32 v4, 7, v4\nv_add_u32 v4, 65536, v4")
        p(f"buffer_load_dwordx2 v[2:3], v4, s[{SRD_FLG}:{SRD_FLG+3}], 0 offen sc1", tag='dec')
        if self.sent:
            p(f"s_and_b32 s{sT1}, s{sH}, 3\ns_lshl_b32 s{sT0}, s{sB}, 5\ns_add_u32 s{sT0}, s{sT0}, s{sT1}\nv_and_b32 v5, 7, v1\nv_lshlrev_b32 v5, 2, v5\nv_add_u32 v5, s{sT0}, v5\nv_lshlrev_b32 v5, 7, v5\nv_add_u32 v5, 65536, v5")
            p(f"buffer_load_dword v6, v5, s[{SRD_FLG}:{SRD_FLG+3}], 0 offen sc1", tag='dec')
    def decide_b(self):
        p = self.p
        p(f"v_cmp_ne_u32 vcc, s{sNON}, v2")
        p.nop(2)
        p(f"s_cmp_eq_u64 vcc, 0\ns_cselect_b32 s{sFAST}, 1, 0")
        p(f"v_cmp_ne_u32 vcc, s{sXW}, v3")
        p.nop(2)
        p(f"s_cmp_eq_u64 vcc, 0\ns_cselect_b32 s{sFAST}, s{sFAST}, 0")
        if self.nofast: p(f"s_mov_b32 s{sFAST}, 0")
        if self.sent:
            p(f"v_cmp_ne_u32 vcc, s{sNON}, v6")
            p.nop(2)
            p(f"s_cmp_eq_u64 vcc, 0\ns_cselect_b32 s{sRDY}, 1, 0")
    def poll(self, d, voff, text_load, want, name):
        lab = f"L_poll_{name}"; done = f"L_polld_{name}"
        d(f"s_mov_b32 s{sT3}, {self.spin_max}")
        d.label(lab)
        d.raw("    " + text_load)
        d.raw("    s_waitcnt vmcnt(0)")
        d(f"v_cmp_ne_u32 vcc, {want}, v2")
        d.nop(2)
        d(f"s_cbranch_vccz {done}")
        d(f"s_sub_u32 s{sT3}, s{sT3}, 1\ns_cmp_eq_u32 s{sT3}, 0\ns_cbranch_scc1 {done}")
        if self.poll_sleep: d(f"s_sleep {self.poll_sleep}")
        d(f"s_branch {lab}")
        d.label(done)
        d.vmq = []
    def poll_pipe(self, d, loadfn, want, name, N=4, R=120, gap=4):
        lab = f"L_poll_{name}"; done = f"L_polld_{name}"
        d(f"s_mov_b32 s{sT3}, {self.spin_max}")
        for i in range(N):
            d.raw("    " + loadfn(R + i))
            if i < N - 1: d(f"s_sleep {gap}")
        d.label(lab)
        for i in range(N):
            d.raw(f"    s_waitcnt vmcnt({N-1})")
            d(f"v_cmp_ne_u32 vcc, {want}, v{R+i}")
            d.nop(2)
            d(f"s_cbranch_vccz {done}")
            d.raw("    " + loadfn(R + i))
        d(f"s_sub_u32 s{sT3}, s{sT3}, 1\ns_cmp_lg_u32 s{sT3}, 0\ns_cbranch_scc1 {lab}")
        d.label(done)
        d.vmq = []
    def wo_setup(self):
        d = self.d
        WO = sPTR + 8
        wo_dma_setup(d, dWO, sW)
        d(f"s_lshr_b32 s{sT0}, s{sH}, 2\ns_mul_i32 s{sT1}, s{sT0}, {512*1152}\ns_and_b32 s{sJ}, s{sH}, 3\ns_mul_i32 s{sT2}, s{sJ}, 288\ns_add_u32 s{sT1}, s{sT1}, s{sT2}")
        d(f"s_add_u32 s{SRD_WO}, s{WO}, s{sT1}\ns_addc_u32 s{SRD_WO+1}, s{WO+1}, 0\ns_sub_u32 s{SRD_WO+2}, 4718592, s{sT1}\ns_mov_b32 s{SRD_WO+3}, 0x20000")
    def spf(self, items):
        d = self.d
        if not getattr(self, 'spf_ready', False):
            self.spf_ready = True
            d(f"s_lshl_b32 s{sT0}, s{sW}, 12")
            d(f"s_add_u32 s{sPK}, s{SRD_K}, s{sT0}\ns_addc_u32 s{sPK+1}, s{SRD_K+1}, 0")
            d(f"s_add_u32 s{sPV}, s{SRD_V}, s{sT0}\ns_addc_u32 s{sPV+1}, s{SRD_V+1}, 0")
        for (t, l0, n) in items:
            base = sPK if t[0] == 'K' else sPV
            for i in range(l0, l0 + n):
                d.raw(f"    s_load_dword s{sDUM}, s[{base}:{base+1}], {int(t[1:])*TILE + i*128:#x}")
    def wo_warm(self, offs=None, first=True):
        d = self.d
        if not self.wo_ready: self.wo_setup(); self.wo_ready = True
        offs = self.warm_offs if offs is None else offs
        self.nwarm = getattr(self, 'nwarm', 0) + 1
        lab = f"L_d_nowarm{self.nwarm}" + self.sfx
        d(f"s_cmp_lg_u32 s{sW}, 0\ns_cbranch_scc1 {lab}")
        if self.warm2:
            d(f"s_and_b32 s{sT0}, s{sB}, 3\ns_lshl_b32 s{sT0}, s{sT0}, 7\nv_add_u32 v2, s{sT0}, v1\nv_mul_u32_u24 v2, 1152, v2\nv_add_u32 v3, {64*1152}, v2")
            for off in offs:
                d.raw(f"    buffer_load_dword v31, v2, s[{SRD_WO}:{SRD_WO+3}], 0 offen offset:{off} {self.wont}")
                d.raw(f"    buffer_load_dword v31, v3, s[{SRD_WO}:{SRD_WO+3}], 0 offen offset:{off} {self.wont}")
        else:
            d(f"s_lshl_b32 s{sT0}, s{sB}, 6\nv_add_u32 v2, s{sT0}, v1\nv_mul_u32_u24 v2, 1152, v2")
            for off in offs:
                d.raw(f"    buffer_load_dword v31, v2, s[{SRD_WO}:{SRD_WO+3}], 0 offen offset:{off} {self.wont}")
        d.label(lab)
        d.nop(2)
    def wo_issue(self, i):
        d = self.d
        if not self.wo_ready: self.wo_setup(); self.wo_ready = True
        d(f"s_add_u32 s{sT0}, s{sJ}, {i}\ns_and_b32 s{sT0}, s{sT0}, 3\ns_mul_i32 s{sSOF}, s{sT0}, {128*1152}")
        d(f"s_mul_i32 s36, s{sW}, {9*1024}")
        for t in range(9):
            d(f"s_add_u32 m0, s36, {WOBASE[i] + t*1024}")
            d(f"buffer_load_dwordx4 v{dWO+t}, s[{SRD_WO}:{SRD_WO+3}], s{sSOF} offen {self.wont} lds", tag=f"O{i}")
    WSTG = 32
    def wo_stage(self, i, slotno):
        d = self.d
        if not self.wo_ready: self.wo_setup(); self.wo_ready = True
        d(f"s_add_u32 s{sT0}, s{sJ}, {i}\ns_and_b32 s{sT0}, s{sT0}, 3\ns_mul_i32 s{sSOF}, s{sT0}, {128*1152}")
        r = self.WSTG + 36*slotno
        for t in range(9):
            d(f"buffer_load_dwordx4 v[{r+4*t}:{r+4*t+3}], v{dWO+t}, s[{SRD_WO}:{SRD_WO+3}], s{sSOF} offen {self.wont}", tag=f"O{i}")
        self.wo_staged[i] = r
    def wo_commit(self, i):
        d = self.d
        r = self.wo_staged.pop(i)
        d(f"s_mul_i32 s36, s{sW}, {9*1024}")
        d(f"v_lshlrev_b32 v2, 4, v1\nv_add_u32 v2, s36, v2\nv_add_u32 v2, {WOBASE[i]}, v2")
        for t in range(9):
            d(f"ds_write_b128 v2, v[{r+4*t}:{r+4*t+3}] offset:{t*1024}")
        self.committed.append(f"O{i}")
    def epi_pre(self):
        p = self.p
        M = GMap()
        T0, T1 = 6, 7
        p(f"v_mov_b32 v{T1}, v{vL}")
        p(f"v_permlane32_swap_b32 v{vL}, v{T1}")
        p(f"v_add_f32 v{T0}, v{vL}, v{T1}")
        p(f"v_rcp_f32 v{T0}, v{T0}")
        p(f"v_mov_b32 v4, v{T0}\nv_mov_b32 v5, v{T0}")
        p(f"v_lshlrev_b32 v{M.vGB}, 4, v1")
        p(f"s_lshl_b32 s{sT0}, s{sW}, 13\nv_add_u32 v{M.vGB}, s{sT0}, v{M.vGB}")
        p(f"s_mov_b32 s{sT1}, 4096")
    def epi_db(self, db):
        p = self.p
        M = GMap()
        A = vACC + 16*db
        L = []
        for i in range(0, 16, 2):
            L.append(f"v_pk_mul_f32 v[{A+i}:{A+i+1}], v[{A+i}:{A+i+1}], v[4:5]")
        F0 = M.vB + (db*2)*4; F1 = F0 + 4
        L += [f"v_cvt_pk_bf16_f32 v{F0}, v{A}, v{A+1}", f"v_cvt_pk_bf16_f32 v{F0+1}, v{A+2}, v{A+3}",
              f"v_cvt_pk_bf16_f32 v{F0+2}, v{A+8}, v{A+9}", f"v_cvt_pk_bf16_f32 v{F0+3}, v{A+10}, v{A+11}",
              f"v_cvt_pk_bf16_f32 v{F1}, v{A+4}, v{A+5}", f"v_cvt_pk_bf16_f32 v{F1+1}, v{A+6}, v{A+7}",
              f"v_cvt_pk_bf16_f32 v{F1+2}, v{A+12}, v{A+13}", f"v_cvt_pk_bf16_f32 v{F1+3}, v{A+14}, v{A+15}"]
        L += [f"v_permlane32_swap_b32 v{F0+k}, v{F1+k}" for k in range(4)]
        L += [f"v_permlane16_swap_b32 v{F0+k}, v{F1+k}" for k in range(4)]
        def stores():
            lf = f"L_ost{db}f"; le = f"L_ost{db}e"
            p.nop(2)
            same = (self.ofast == self.safe)
            if not same: p(f"s_cmp_lg_u32 s{sFAST}, 0\ns_cbranch_scc1 {lf}")
            first = True
            for aux in ((self.safe,) if same else (self.safe, self.ofast)):
                p.raw(f"    buffer_store_dwordx4 v[{F0}:{F0+3}], v{M.vGB}, s[{SRD_O}:{SRD_O+3}], 0 offen offset:{db*1024} {aux}")
                p.raw(f"    buffer_store_dwordx4 v[{F1}:{F1+3}], v{M.vGB}, s[{SRD_O}:{SRD_O+3}], s{sT1} offen offset:{db*1024} {aux}")
                if first and not same: p(f"s_branch {le}"); p.label(lf)
                first = False
            if not same: p.label(le)
            p.vmq.append(('O', set(), set())); p.vmq.append(('O', set(), set()))
        L.append(stores)
        return L
    def epilogue(self):
        if self.endopt: return
        self.epi_pre()
        for db in range(4):
            for t in self.epi_db(db): emit1(self.p, t)
    def tail(self):
        p, d = self.p, self.d
        M = GMap()
        X, K, V, WQ, WO, OUT, DBG, WS = [sPTR + 2*i for i in range(8)]
        def bar():
            p("s_barrier"); d("s_barrier")
        p(f"s_and_b32 s{sJ}, s{sH}, 3")
        p(f"s_lshr_b32 s{sT0}, s{sH}, 2")
        p(f"s_lshl_b32 s{sT1}, s{sB}, 5\ns_lshl_b32 s{sT2}, s{sT0}, 2\ns_add_u32 s{sT1}, s{sT1}, s{sT2}\ns_lshl_b32 s{sT1}, s{sT1}, 15")
        p(f"s_add_u32 s{SRD_OG}, s{WS}, s{sT1}\ns_addc_u32 s{SRD_OG+1}, s{WS+1}, 0\ns_mov_b32 s{SRD_OG+2}, 131072\ns_mov_b32 s{SRD_OG+3}, 0x20000")
        p(f"s_lshl_b32 s{sT1}, s{sB}, 2\ns_add_u32 s{sT1}, s{sT1}, s{sJ}\ns_lshl_b32 s{sT1}, s{sT1}, 3\ns_add_u32 s{sT1}, s{sT1}, s{sT0}\ns_mul_i32 s{sT1}, s{sT1}, 36864\ns_add_u32 s{sT1}, s{sT1}, {WS_PART}")
        p(f"s_add_u32 s{SRD_P}, s{WS}, s{sT1}\ns_addc_u32 s{SRD_P+1}, s{WS+1}, 0\ns_mov_b32 s{SRD_P+2}, 36864\ns_mov_b32 s{SRD_P+3}, 0x20000")
        p("v_and_b32 v2, 15, v1\nv_lshrrev_b32 v3, 4, v1")
        p("v_lshrrev_b32 v4, 2, v2\nv_and_b32 v5, 3, v2")
        p("v_lshl_add_u32 v4, v3, 2, v4\nv_mul_u32_u24 v4, 288, v4\nv_lshl_add_u32 v4, v5, 3, v4")
        for i in range(4): p(f"v_add_u32 v{M.vGA+i}, {WOBASE[i]}, v4")
        g_store_setup(p, M, sW)
        assert self.wo_next >= 1
        def pub_wave():
            p.wait_vm(0)
            lab = "L_pub1e"; lf = "L_pub1f"
            p(f"s_lshl_b32 s{sT0}, s{sID}, 7\ns_lshl_b32 s{sT1}, s{sW}, 2\ns_add_u32 s{sT0}, s{sT0}, s{sT1}\nv_mov_b32 v3, s{sNON}")
            p(f"s_cmp_lg_u32 s{sFAST}, 0\ns_cbranch_scc1 {lf}")
            p.raw(f"    buffer_store_dword v3, off, s[{SRD_FLG}:{SRD_FLG+3}], s{sT0} {self.safe}")
            p(f"s_branch {lab}")
            p.label(lf)
            p.raw(f"    buffer_store_dword v3, off, s[{SRD_FLG}:{SRD_FLG+3}], s{sT0}")
            p.label(lab)
            p.nop(2)
        if self.perwave and self.f0_at < 0: pub_wave()
        p.wait_lgkm(0)
        d.wait_vm_tag(["O0"])
        d.wait_lgkm(0)
        bar()
        self.stamp()
        def f1():
            if self.perwave:
                pub_wave(); return
            p.wait_vm(0)
            bar()
            lab = "L_nopub1"; lf = "L_pub1f"
            p(f"s_cmp_lg_u32 s{sW}, 0\ns_cbranch_scc1 {lab}")
            p(f"s_lshl_b32 s{sT0}, s{sID}, 7\nv_mov_b32 v3, s{sNON}")
            p(f"s_cmp_lg_u32 s{sFAST}, 0\ns_cbranch_scc1 {lf}")
            p.raw(f"    buffer_store_dword v3, off, s[{SRD_FLG}:{SRD_FLG+3}], s{sT0} {self.safe}")
            p(f"s_branch {lab}")
            p.label(lf)
            p.raw(f"    buffer_store_dword v3, off, s[{SRD_FLG}:{SRD_FLG+3}], s{sT0}")
            p.label(lab)
            p.nop(2)
        while self.wo_next < (4 if self.wo_stage_at else 3):
            if self.wo_next in self.wo_staged: self.wo_commit(self.wo_next)
            else: self.wo_issue(self.wo_next)
            self.wo_next += 1
        def pollpos(pos):
            lab = f"L_posok{pos}"
            if pos > 1:
                p(f"s_bitcmp1_b32 s{sRDY}, {pos}\ns_cbranch_scc1 {lab}")
            p(f"s_add_u32 s{sT0}, s{sJ}, 1\nv_and_b32 v4, 3, v1\nv_add_u32 v4, s{sT0}, v4\nv_and_b32 v4, 3, v4\ns_and_b32 s{sT1}, s{sID}, {~3 & 0xffffffff:#x}\nv_add_u32 v4, s{sT1}, v4\nv_lshlrev_b32 v4, 7, v4")
            lp = f"L_pollq{pos}"; ld = f"L_pollqd{pos}"
            p(f"s_mov_b32 s{sT3}, {self.spin_max}")
            p.label(lp)
            p.raw(f"    buffer_load_dword v2, v4, s[{SRD_FLG}:{SRD_FLG+3}], 0 offen sc1")
            p.raw("    s_waitcnt vmcnt(0)")
            p(f"v_cmp_eq_u32 vcc, s{sNON}, v2")
            p.nop(4)
            p(f"s_lshl_b32 s{sRDY}, vcc_lo, 1")
            p(f"s_bitcmp1_b32 s{sRDY}, {pos}\ns_cbranch_scc1 {ld}")
            p(f"s_sub_u32 s{sT3}, s{sT3}, 1\ns_cmp_lg_u32 s{sT3}, 0\ns_cbranch_scc1 {lp}")
            p.label(ld)
            p.label(lab)
            p.nop(2)
        def getB():
            if self.posflag:
                pollpos(1)
                self.stamp()
                loadB(1)
                return
            p(f"s_and_b32 s{sT0}, s{sID}, {~3 & 0xffffffff:#x}\nv_and_b32 v4, 3, v1\nv_add_u32 v4, s{sT0}, v4\nv_lshlrev_b32 v4, 7, v4")
            if self.perwave: p(f"s_lshl_b32 s{sT1}, s{sW}, 2\nv_add_u32 v4, s{sT1}, v4")
            self.poll(p, None, f"buffer_load_dword v2, v4, s[{SRD_FLG}:{SRD_FLG+3}], 0 offen sc1", f"s{sNON}", "f1")
            self.stamp()
            loadB(1)
        def loadB(pos):
            p(f"s_add_u32 s{sT0}, s{sJ}, {pos}\ns_and_b32 s{sT0}, s{sT0}, 3\ns_lshl_b32 s{sT0}, s{sT0}, 15\ns_add_u32 s{sT1}, s{sT0}, 4096")
            lf = f"L_ldB{pos}f"; le = f"L_ldB{pos}e"
            regs = []
            if self.plainB:
                p(f"s_cmp_lg_u32 s{sFAST}, 0\ns_cbranch_scc1 {lf}")
            for aux in ((self.safe, '') if self.plainB else (self.safe,)):
                for db in range(4):
                    for r in range(2):
                        reg = M.vB + ((pos*4 + db)*2 + r)*4
                        p.raw(f"    buffer_load_dwordx4 v[{reg}:{reg+3}], v{M.vGB}, s[{SRD_OG}:{SRD_OG+3}], s{sT1 if r else sT0} offen offset:{db*1024} {aux}")
                if aux and self.plainB:
                    p(f"s_branch {le}"); p.label(lf)
            if self.plainB: p.label(le)
            for db in range(4):
                for r in range(2):
                    reg = M.vB + ((pos*4 + db)*2 + r)*4
                    p.vmq.append((f"B{pos}", {f"v{x}" for x in range(reg, reg+4)}, set()))
        def pre(i):
            if i == 0: return
            if self.stamps == 'g': self.stamp()
            d.wait_vm_tag([f"O{i}"])
            d.wait_lgkm(0)
            bar()
            if self.stamps == 'g': self.stamp()
        def b2():
            if self.posflag: pollpos(2)
            loadB(2)
        def b3():
            if self.posflag: pollpos(3)
            loadB(3)
            if self.wo_next < 4:
                bar()
                self.wo_issue(3); self.wo_next = 4
        hk = {(self.f0_at if self.f0_at >= 0 else -1): f1, self.f1_at: getB, 36 + self.b_at: b2, 36 + self.b_at2: b3}
        if self.stamps == 'g1':
            def wrap2(fn):
                def g():
                    self.stamp(); fn(); self.stamp()
                return g
            hk[36 + self.b_at] = wrap2(hk[36 + self.b_at]); hk[36 + self.b_at2] = wrap2(hk[36 + self.b_at2])
            hk[36] = self.stamp; hk[37] = self.stamp; hk[45] = self.stamp; hk[60] = self.stamp; hk[72] = self.stamp
        tmp = [M.vB, M.vB + 12]
        cnt = [0]
        def fin(nb):
            g_store_block(p, M, SRD_P, nb, tmp[cnt[0] & 1], aux=(self.psc or self.safe)); cnt[0] += 1
        g_compute(p, M, pre, hooks=hk, last_nouter=True, fin=fin)
        self.stamp()
        def rsetup(q):
            q(f"s_and_b32 s{sJ}, s{sH}, 3")
            q(f"s_lshl_b32 s{sT1}, s{sB}, 2\ns_add_u32 s{sT1}, s{sT1}, s{sJ}\ns_mul_i32 s{sT1}, s{sT1}, {8*36864}\ns_add_u32 s{sT1}, s{sT1}, {WS_PART}")
            q(f"s_add_u32 s{SRD_P}, s{WS}, s{sT1}\ns_addc_u32 s{SRD_P+1}, s{WS+1}, 0\ns_mov_b32 s{SRD_P+2}, {8*36864}\ns_mov_b32 s{SRD_P+3}, 0x20000")
            q(f"s_mul_i32 s{sT1}, s{sB}, 147456")
            q(f"s_add_u32 s{SRD_OUT}, s{OUT}, s{sT1}\ns_addc_u32 s{SRD_OUT+1}, s{OUT+1}, 0\ns_mov_b32 s{SRD_OUT+2}, 147456\ns_mov_b32 s{SRD_OUT+3}, 0x20000")
            q(f"s_mov_b32 s{sW8}, s{sROLE}")
        if not self.sent:
            d.wait_vm(0)
            rsetup(d)
            p.wait_vm(0)
            rsetup(p)
            bar()
            self.stamp()
            lab = "L_nopub2"
            p(f"s_cmp_lg_u32 s{sW}, 0\ns_cbranch_scc1 {lab}")
            p(f"s_lshl_b32 s{sT0}, s{sID}, 7\ns_add_u32 s{sT0}, s{sT0}, 32768\nv_mov_b32 v3, s{sNON}")
            p.raw(f"    buffer_store_dword v3, off, s[{SRD_FLG}:{SRD_FLG+3}], s{sT0} {self.safe}")
            p(f"s_lshl_b32 s{sT0}, s{sB}, 5\ns_add_u32 s{sT0}, s{sT0}, s{sJ}\nv_and_b32 v4, 7, v1\nv_lshlrev_b32 v4, 2, v4\nv_add_u32 v4, s{sT0}, v4\nv_lshlrev_b32 v4, 7, v4\nv_add_u32 v4, 32768, v4")
            self.poll_pipe(p, lambda r: f"buffer_load_dword v{r}, v4, s[{SRD_FLG}:{SRD_FLG+3}], 0 offen sc1", f"s{sNON}", "f2", N=self.pN, gap=self.pgap)
            p.label(lab)
            p.vmq = []
            p.nop(2)
            bar()
            self.stamp()
            d("s_branch L_R")
            p.label("L_R")
            p.nop(2)
            r_phase9(p, sW8, SRD_P, SRD_OUT, sH, aux=self.safe, oaux=self.oaux)
        else:
            lab = "L_rdyok"
            p(f"s_cmp_lg_u32 s{sRDY}, 0\ns_cbranch_scc1 {lab}")
            p(f"s_lshl_b32 s{sT0}, s{sB}, 5\ns_add_u32 s{sT0}, s{sT0}, s{sJ}\nv_and_b32 v4, 7, v1\nv_lshlrev_b32 v4, 2, v4\nv_add_u32 v4, s{sT0}, v4\nv_lshlrev_b32 v4, 7, v4\nv_add_u32 v4, 65536, v4")
            vq = list(p.vmq)
            self.poll(p, None, f"buffer_load_dword v2, v4, s[{SRD_FLG}:{SRD_FLG+3}], 0 offen sc1", f"s{sNON}", "rdy")
            p.label(lab)
            p.vmq = vq
            p.nop(2)
            d.wait_vm(0)
            rsetup(d)
            rsetup(p)
            bar()
            self.stamp()
            d("s_branch L_R")
            p.label("L_R")
            p.nop(2)
            p.vmq = []
            r_phase10(p, sW8, SRD_P, SRD_OUT, sH, self.spin_max, aux=self.safe, sleep=self.rsleep)
    def write_stamps(self, p, n):
        if not self.stamps: return
        if self.dbgst:
            if p is not self.p: return
            DBG = sPTR + 12
            p.wait_all()
            p(f"s_memrealtime s[{sSTAMP+2*n}:{sSTAMP+2*n+1}]")
            p.raw("    s_waitcnt lgkmcnt(0)"); p.lgq = []
            p("s_mov_b64 exec, 1")
            p("v_mov_b32 v5, 0")
            p(f"s_not_b32 s{sT0}, s{sSTAMP}\nv_mov_b32 v6, s{sT0}")
            p(f"global_atomic_umax v5, v6, s[{DBG}:{DBG+1}] offset:4 sc1")
            for i in range(n + 1):
                p(f"v_mov_b32 v{8+i}, s{sSTAMP+2*i}")
                p(f"global_atomic_umax v5, v{8+i}, s[{DBG}:{DBG+1}] offset:{8+4*i} sc1")
            p("s_mov_b64 exec, -1")
            return
        WS = sPTR + 14
        p.wait_all()
        p(f"s_memrealtime s[{sSTAMP+2*n}:{sSTAMP+2*n+1}]")
        p.raw("    s_waitcnt lgkmcnt(0)"); p.lgq = []
        p(f"s_lshl_b32 s{sT0}, s2, 3\ns_add_u32 s{sT0}, s{sT0}, s{sROLE}\ns_lshl_b32 s{sT0}, s{sT0}, 8\ns_add_u32 s{sT0}, s{sT0}, {32<<20}")
        p(f"s_add_u32 s56, s{WS}, s{sT0}\ns_addc_u32 s57, s{WS+1}, 0")
        p("v_mov_b32 v5, 0")
        if p is self.p:
            p(f"v_mov_b32 v6, s{sFAST}\nv_mov_b32 v7, s{sXW}\nglobal_store_dwordx2 v5, v[6:7], s[56:57] offset:240")
            p("s_nop 1")
            p("s_sub_u32 s94, s94, s92\nv_mov_b32 v6, s94\nv_mov_b32 v7, 0\nglobal_store_dwordx2 v5, v[6:7], s[56:57] offset:232")
            p("s_nop 1")
        for i in range(n + 1):
            p(f"v_mov_b32 v6, s{sSTAMP+2*i}\nv_mov_b32 v7, s{sSTAMP+2*i+1}")
            p(f"global_store_dwordx2 v5, v[6:7], s[56:57] offset:{8*i}")
            p("s_nop 1")
    def build(self):
        p, d = self.p, self.d
        head = Prog(); head.unsafe_stamps = True
        self.head = head
        self.prologue_common(head)
        self.nstamp = 1 if self.stamps else 0; self.dstamp = self.nstamp
        p.hist = list(head.hist); d.hist = list(head.hist)
        p.smem_pending = list(head.smem_pending); d.smem_pending = list(head.smem_pending)
        p.lgq = list(head.lgq); d.lgq = list(head.lgq)
        self.slot = {}; self.free = list(range(NSLOT)); self.inflight = []; self.committed = []
        self.stg = {}; self.stgfree = [dSTG + 16*i for i in range(11)]; self.issued_at = {}
        H = ["K0", "K1"]
        for t in range(8):
            H.append(f"V{t}")
            if t + 2 < 8: H.append(f"K{t+2}")
        if self.plan is None:
            self.plan = {-1: ["X0", "W0", "X1", "W1"]}
            for k in range(0, 7): self.plan[k] = [f"X{k+2}", f"W{k+2}"]
            self.plan[7] = H[0:3]; self.plan[8] = H[3:5]
        order = []
        for k in sorted(self.plan): order += [op for op in self.plan[k] if op[0] != '!']
        self.stream = order + [h for h in H if h not in order]
        self.order = list(self.stream)
        if isinstance(self.warm_at, (tuple, list)):
            self.extra = {}
            for k, off in zip(self.warm_at, self.warm_offs):
                self.extra.setdefault(k, []).append(lambda off=off: self.wo_warm((off,)))
        else:
            self.extra = {self.warm_at: [self.wo_warm]} if self.warm_at is not None else {}
        if self.stall_at is not None:
            k, n = self.stall_at
            self.extra.setdefault(k, []).append(lambda n=n: self.d(f"s_sleep {n}"))
        if self.spf_plan:
            for k, items in self.spf_plan.items():
                self.extra.setdefault(k, []).append(lambda items=items: self.spf(items))
        self.wo_staged = {}
        if self.wo_stage_at:
            for n, (k, i) in enumerate(self.wo_stage_at):
                self.extra.setdefault(k, []).append(lambda i=i, n=n: self.wo_stage(i, n))
        self.wo_next = 0
        self.prologue_d()
        if self.touch:
            d(f"buffer_load_dword v24, off, s[{SRD_K}:{SRD_K+3}], 0 nt", tag='touch')
            d(f"buffer_load_dword v25, off, s[{SRD_V}:{SRD_V+3}], 0 nt", tag='touch')
            if self.plan[-1][0][0] in 'KV':
                d("v_lshlrev_b32 v30, 21, v1")
                d(f"buffer_load_dword v26, off, s[{SRD_X}:{SRD_X+3}], 0", tag='touch')
                d(f"buffer_load_dword v27, v30, s[{SRD_WQ}:{SRD_WQ+3}], 0 offen", tag='touch')
        self.pump(-1)
        self.prologue_c()
        if not self.noflag: self.nonce_a()
        self.q_phase()
        if self.stamps: p("s_memtime s[96:97]") if False else None
        self.stamp()
        if self.stamps is True or self.stamps == 'clk': p("s_memtime s[92:93]")
        self.attention()
        if self.stamps is True or self.stamps == 'clk': p("s_memtime s[94:95]")
        self.stamp()
        self.epilogue()
        if not self.notail: self.tail()
        if self.padto:
            p.label("L_pad")
            p.raw("    s_memrealtime s[94:95]")
            p.raw("    s_waitcnt lgkmcnt(0)")
            p.raw("    s_sub_u32 s94, s94, s92")
            p.raw(f"    s_cmp_lt_u32 s94, {self.padto}")
            p.raw("    s_cbranch_scc1 L_pad")
        if self.stamps and not self.notail:
            p(f"s_cmp_ge_u32 s{sROLE}, 4\ns_cbranch_scc1 L_end")
        self.write_stamps(p, self.nstamp)
        p("s_endpgm")
        if self.notail:
            self.write_stamps(d, self.dstamp)
            d("s_endpgm")
        if self.ldfirst:
            txt = head.out + d.out + ["L_compute:", "    s_nop 3"] + p.out + ["L_end:", "    s_endpgm"] + self.emit_rare()
        else:
            txt = head.out + p.out + ["L_loader:", "    s_nop 3"] + d.out + ["L_end:", "    s_endpgm"] + self.emit_rare()
        return "\n".join(txt) + "\n"

def HL():
    H = ["K0", "K1"]
    for t in range(8):
        H.append(f"V{t}")
        if t + 2 < 8: H.append(f"K{t+2}")
    return H
def mkplan(w, pairs, pre=0, commits=None):
    H = HL(); hi = 0
    plan = {k: [] for k in range(-1, 9)}
    plan[-1] += H[:pre]; hi = pre
    for k in range(-1, 9):
        for c in w.get(k, []): plan[k] += [f"X{c}", f"W{c}"]
        if k in pairs:
            plan[k] += H[hi:hi+2]; hi += 2
    staged = H[:hi]
    for k, ts in (commits or {}).items():
        plan[k] += ['!' + t for t in ts if t in staged]
    return plan, staged
def build_multi(kw, variants, sel='rot'):
    gens = []
    for i, var in enumerate(variants):
        plan, staged = var[0], var[1]
        kw2 = dict(kw); kw2.update(var[2] if len(var) > 2 else {})
        g = Gen(plan={k: list(v) for k, v in plan.items()}, stage=staged, sfx=f"_v{i}", **kw2)
        g.build(); gens.append(g)
    g0 = gens[0]
    for g in gens[1:]: assert g.p.out == g0.p.out, "compute code differs"
    n = len(gens)
    txt = list(g0.head.out) + g0.p.out + ["L_loader:", "    s_nop 3"]
    if n > 1:
        if sel == 'xcd': txt += [f"    s_lshr_b32 s{sT0}, s{sH}, 4"]
        elif sel == 'b4': txt += [f"    s_lshr_b32 s{sT0}, s{sB}, 2"]
        elif sel in ('b3', 'b5', 'b6'): txt += [f"    s_cmp_ge_u32 s{sB}, {int(sel[1])}", f"    s_cselect_b32 s{sT0}, 1, 0"]
        elif sel == 'b2': txt += [f"    s_lshr_b32 s{sT0}, s{sB}, 1"]
        elif sel == 'bpar': txt += [f"    s_and_b32 s{sT0}, s{sB}, 1"]
        elif sel == 'xcdpar': txt += [f"    s_lshr_b32 s{sT0}, s{sH}, 2", f"    s_and_b32 s{sT0}, s{sT0}, 1"]
        else: txt += [f"    s_add_u32 s{sT0}, s{sB}, s{sH}", f"    s_and_b32 s{sT0}, s{sT0}, {n-1}"]
        for i in range(1, n): txt += [f"    s_cmp_eq_u32 s{sT0}, {i}", f"    s_cbranch_scc1 L_var{i}"]
    for i, g in enumerate(gens):
        if i: txt += [f"L_var{i}:", "    s_nop 3"]
        txt += g.d.out
    txt += ["L_end:", "    s_endpgm"] + g0.emit_rare()
    return "\n".join(txt) + "\n", g0

def wrap(body, launch, vgpr=NVGPR, sgpr=102, accum=NARCH, name=NAME, header=""):
    return f"""{header}; @launch {launch}
.amdgcn_target "amdgcn-amd-amdhsa--gfx950"
.text
.globl {name}
.p2align 8
.type {name},@function
{name}:
{body}
.section .rodata,"a"
.p2align 6
.amdhsa_kernel {name}
  .amdhsa_next_free_vgpr {vgpr}
  .amdhsa_next_free_sgpr {sgpr}
  .amdhsa_accum_offset {accum}
  .amdhsa_group_segment_fixed_size 0
  .amdhsa_kernarg_size 64
  .amdhsa_user_sgpr_count 2
  .amdhsa_user_sgpr_kernarg_segment_ptr 1
  .amdhsa_system_sgpr_workgroup_id_x 1
.end_amdhsa_kernel
"""


HDR = open('standalone__mha_block_cached__near_ridge.s.ref').read().split("\n")[:9]
HDR = "\n".join(l for l in HDR if '@launch' not in l) + "\n"
if __name__ == "__main__":
    import sys
    L = "grid=(256,1,1) block=(512,1,1) lds=163840"
    base = dict(flyh=2, PD=6)
    b = dict(flyh=3, warm_at=10, PD=6)
    def out(nm, txt): open(nm + ".s", "w").write(wrap(txt, L, header=HDR))
    g = Gen(stamps=True, **b); out('fx_base', g.build())
    WB = {-1: [0, 1], 0: [2], 1: [3], 2: [4], 3: [5], 4: [6], 5: [7], 6: [8]}
    H = HL()
    def Eplan():
        plan, st = mkplan(WB, [], 0, None)
        plan[7] = H[0:3]; plan[8] = H[3:5]
        return plan, st
    def Lplan(n):
        com = {6: ["V0", "V1"], 7: ["K0", "K1"], 8: ["K2", "K3"]}
        plan, st = mkplan(WB, [], n, com)
        return plan, st
    g = Gen(**b); out('fw_base', g.build())
    g = Gen(stamps='arr', notail=True, **b); out('fx_base_arr', g.build())
    g = Gen(stamps='arr2', notail=True, **b); out('fx_base_arr2', g.build())
    b5 = dict(b); b5['flyh'] = 5
    g = Gen(stamps='arr2', notail=True, **b5); out('fx_f5_arr2', g.build())
    g = Gen(stamps='arr2', notail=True, nowo=True, flyh=3, warm_at=None, PD=6); out('fx_nowo_arr2', g.build())
    def planC(pa=4, pb=7, fast=True):
        P = {k: [] for k in range(-1, 9)}
        P[-1] = ["X0", "W0", "X1", "W1"]
        P[0] = ["X2", "W2", "X3", "W3"]
        P[1] = ["X4", "W4", "X5", "W5"]
        P[2] = ["!X5", "!W5", "X6", "W6", "X7", "W7"]
        P[3] = ["!X6", "!W6", "X8", "W8"]
        P[4] = ["!X7", "!W7"]
        P[5] = ["!X8", "!W8"]
        st = ["X5", "W5", "X6", "W6", "X7", "W7", "X8", "W8"]
        H = HL()
        P[pa] += H[0:2]; st += H[0:2]
        if pb <= 8:
            P[pb] += H[2:4]; st += H[2:4]
        P[7] = P[7] + ["!K0", "!K1"] if pa <= 5 else P[7]
        return P, st
    b['warm_at'] = 3; b['warm_offs'] = (0, 128, 284)
    g = Gen(stamps=True, **b); out('fy_base', g.build())
    g = Gen(stamps='g', **b); out('fy_st_g', g.build())
    g = Gen(stamps=True, nofast=True, **b); out('fy_nf', g.build())
    g = Gen(stamps=True, nofast=True, f0_at=12, f1_at=16, **b); out('fy_nf2', g.build())
    g = Gen(stamps=True, nofast=True, f0_at=16, f1_at=20, **b); out('fy_nf3', g.build())
    g = Gen(stamps=True, ofast='sc1', f0_at=12, f1_at=16, **b); out('fy_hy', g.build())
    g = Gen(stamps='g1', nofast=True, f0_at=12, f1_at=16, b_at=4, b_at2=14, **b); out('fy_st_g1', g.build())
    h = dict(ofast='sc1', f0_at=16, f1_at=20, **b)
    g = Gen(**h); out('ft_hy2', g.build())
    g = Gen(stamps=True, **h); out('fy_hy2', g.build())
    h = dict(h); h['qpd'] = 1; h['wpair'] = False
    H = HL()
    def bp():
        P = {-1: ["X0", "W0", "X1", "W1"]}
        for k in range(0, 7): P[k] = [f"X{k+2}", f"W{k+2}"]
        P[7] = []; P[8] = []
        return P
    hn = dict(h); hn['warm_at'] = None
    import copy
    P3 = bp(); P3[7] = H[0:2]
    def mk(nm, **kw):
        k2 = dict(h); k2.update(kw)
        g = Gen(plan=copy.deepcopy(P3), **k2); out(nm, g.build())
    h['nonce_late'] = True
    def spfplan(k0, k1, per, order=("K0", "K1", "V0", "K2")):
        lines = [(t, i) for t in order for i in range(32)]
        plan = {}; pos = 0
        for k in range(k0, k1 + 1):
            take = lines[pos:pos + per]; pos += per
            items = []
            for t, i in take:
                if items and items[-1][0] == t and items[-1][1] + items[-1][2] == i: items[-1] = (t, items[-1][1], items[-1][2] + 1)
                else: items.append((t, i, 1))
            plan[k] = items
        return plan
    mk('fy_base2', stamps=True)
    mk('fy_arr3', stamps='arr2', notail=True)
    mk('fy_rk1', stamps=True, rotk=1); mk('fy_rk2', stamps=True, rotk=2); mk('fy_rk3', stamps=True, rotk=3)
    mk('fr_base2'); mk('fr_rk1', rotk=1); mk('fr_rk2', rotk=2); mk('fr_rk3', rotk=3)
    hh = dict(h); hh['rotk'] = 1
    def Eplan3():
        P = copy.deepcopy(P3); return P, []
    h = dict(h); h['PD'] = 7; h['wgrp'] = 4
    mk2 = lambda nm, **kw: None
    def mkc(nm, n=4, **kw):
        k2 = dict(h); k2.update(kw)
        txt, g = build_multi(k2, [Eplan3(), Lplan(n)], sel='bh'); out(nm, txt)
    mkc('fy_cl4', stamps=True); mkc('fr_cl4')
    def Lslow(ks, fly=1, p7=True):
        P = copy.deepcopy(P3)
        if not p7: P[7] = []; P[8] = ["K0"]
        return P, [], dict(fly_sched={k: fly for k in ks})
    def Ev(**kw): return (copy.deepcopy(P3), [], kw)
    def Lp(n, **kw):
        P, st = Lplan(n); return (P, st, kw)
    th = lambda a, b_: dict(fly_sched={k: 2 for k in range(a, b_)})
    base = [Lp(7, flyh=5), Ev(flyh=5)]
    def mkv(nm, **kw):
        k2 = dict(h); k2.update(kw)
        txt, g = build_multi(dict(stamps=True, **k2), base, sel='b4'); out('fy_' + nm, txt)
        txt, g = build_multi(dict(**k2), base, sel='b4'); out('fq_' + nm, txt)
    WB3 = {-1: [0, 1, 2], 0: [3], 1: [4], 2: [5], 3: [6], 4: [7], 5: [8]}
    def Lp3(n, **kw):
        com = {6: ["V0", "V1"], 7: ["K0", "K1"], 8: ["K2", "K3"]}
        P, st = mkplan(WB3, [], n, com); return (P, st, kw)
    def Ev3(**kw):
        P, st = mkplan(WB3, [], 0, None); P[7] = H[0:2]; return (P, st, kw)
    def Ev3b(**kw):
        P, st = mkplan(WB3, [], 0, None); P[6] = H[0:2]; P[7] = ["!K0", "!K1"]; return (P, ["K0", "K1"], kw)
    def mkw(nm, base2, sel='b4', **kw):
        k2 = dict(h); k2.update(kw)
        txt, g = build_multi(dict(stamps=True, **k2), base2, sel=sel); out('fy_' + nm, txt)
        txt, g = build_multi(dict(**k2), base2, sel=sel); out('fq_' + nm, txt)
    mkw('x0', base)
    b2 = [Lp(7, flyh=5, lazy_commit=True), Ev(flyh=5)]
    mkw('e1', b2)
    def Lq(n, kp, **kw):
        com = {6: ["V0", "V1"], 7: ["K0", "K1"], 8: ["K2", "K3"]}
        P, st = mkplan(WB, [kp], n, com); return (P, st, kw)
    def Eq(kp, **kw):
        P, st = mkplan(WB, [kp], 0, {7: ["K0", "K1"]}); return (P, st, kw)
    lk = dict(flyh=5, lazy_commit=True)
    mkw('m3', b2, stall_at=(5, 16))
    mkw('o1', b2, qdrain=True)
    mkw('o2', b2, qdrain=True, qpd=2)
    mkw('n3', [Lq(5, 5, **lk), Eq(5, **lk)])
    mkw('o3', b2, qpd=2, wpair=True)
```

```python
from prog import *
from gr import *
import math, struct

NAME = "standalone__mha_block_cached__near_ridge_kernel"
SCALE_C = math.log2(math.e) / math.sqrt(128.0)
def f2u(x): return struct.unpack('<I', struct.pack('<f', x))[0]

sB, sH, sW = 3, 4, 5
SRD_X, SRD_WQ, SRD_K, SRD_V, SRD_O = 8, 12, 16, 20, 24
sROT = 28
sT0, sT1, sT2, sT3 = 29, 30, 31, 32
sLDSW = 33
sC = 34
sSOF = 35
sTHR = 37
sROLE = 38
sID = 39
SRD_WO, SRD_OG, SRD_P, SRD_FLG, SRD_OUT = 96, 12, 16, 20, 24
sJ = 6
sFAST = 7
sNON = 58
sXW = 59
sW8 = 57
sROTK = 86
sPK, sPV = 88, 90
sDUM = 87
sRDY = 56
WS_FLAG = 24 << 20
WOBASE = [73728, 0, 36864, 110592]
sPTR = 40
sSTAMP = 60

vKR = 16
vVR, vVR2 = 24, 28
vXR, vWR = 176, 188
vTA, vTB = 32, 36
vM, vL, vMC, vAL = 40, 41, 42, 43
vT = 44
vACC = 48
vQP = 112
vS = 144
vP = 176
vE = 192
vNEG = 208
vQF = 112
NARCH = 224
aFR = 0
aBF = 32
NVGPR = 256
dXG, dWG, dKG, dVG = 8, 12, 16, 20
dLW = 21
dWO = 22
dSTG = 32

TILE = 16384
NSLOT = 10
THR = 2.0 ** 30

def emit1(p, x):
    if callable(x): x()
    else: p(x)

class Gen:
    def __init__(self, stamps=False, hnt='nt', wnt='', rot=True, o_sc='', PD=4, force_rare=False,
                 plan=None, flyw=4, flyh=3, fly0=4, stage=(), qdrain=False, touch=True, samekv=False, qpd=2, wpair=True, fused=True, wo_at=(11, 14), spin_max=200000, dbgst=False, warm_at=10, notail=False, noflag=False, nowo=False, nofast=False, f1_at=20, poll_sleep=0, wgrp=2, plainB=False, sfx='', sent=False, rsleep=1, wont='', warm_offs=(0, 128, 256, 284), b_at=2, b_at2=12, f0_at=6, wo_stage_at=None, ofast='', psc=None, perwave=False, ldfirst=False, padto=0, nonce_late=False, spf_plan=None, endopt=False, rotk=0, fly_sched=None, oaux='', lazy_commit=False, warm2=False, pN=4, pgap=4, posflag=False, stall_at=None, dprio=0):
        self.p = Prog(); self.d = Prog()
        self.p.unsafe_stamps = True; self.d.unsafe_stamps = True
        self.stamps = stamps; self.hnt = hnt; self.wnt = wnt; self.rot = rot
        self.o_sc = o_sc; self.PD = PD
        self.nstamp = 0; self.dstamp = 0
        self.rare = []
        self.thr = 4.0 if force_rare else THR
        self.flyw = flyw; self.flyh = flyh; self.fly0 = fly0
        self.stage = list(stage)
        self.plan = plan
        self.qdrain = qdrain; self.qpd = qpd; self.wpair = wpair; self.touch = touch; self.samekv = samekv
        self.nsync = 0; self.sfx = sfx
        self.ring = set(range(5)); self.lowest = True; self.extra = {}
        self.notail = notail; self.noflag = noflag; self.nowo = nowo; self.nofast = nofast; self.f1_at = f1_at; self.poll_sleep = poll_sleep; self.wgrp = wgrp; self.plainB = plainB; self.sent = sent; self.rsleep = rsleep; self.wont = wont; self.warm_offs = warm_offs; self.b_at = b_at; self.b_at2 = b_at2; self.f0_at = f0_at; self.wo_stage_at = wo_stage_at; self.ofast = ofast; self.psc = psc; self.perwave = perwave; self.ldfirst = ldfirst; self.padto = padto; self.nonce_late = nonce_late; self.spf_plan = spf_plan; self.endopt = endopt; self.rotk = rotk; self.fly_sched = fly_sched or {}; self.oaux = oaux; self.lazy_commit = lazy_commit; self.warm2 = warm2; self.pN = pN; self.pgap = pgap; self.posflag = posflag; self.stall_at = stall_at; self.dprio = dprio
        self.dbgst = dbgst; self.warm_at = warm_at; self.wo_ready = False
        self.fused = fused; self.wo_at = wo_at; self.spin_max = spin_max; self.safe = 'sc1'
    def stamp(self):
        if self.stamps and self.nstamp < 18:
            self.p(f"s_memrealtime s[{sSTAMP+2*self.nstamp}:{sSTAMP+2*self.nstamp+1}]")
            self.nstamp += 1
    def stamp_d(self):
        if self.stamps and self.dstamp < 18:
            self.d(f"s_memrealtime s[{sSTAMP+2*self.dstamp}:{sSTAMP+2*self.dstamp+1}]")
            self.dstamp += 1
    def prologue_common(self, p):
        p(f"s_memrealtime s[{sSTAMP}:{sSTAMP+1}]") if self.stamps else None
        if self.padto: p("s_memrealtime s[92:93]")
        p(f"s_load_dwordx16 s[{sPTR}:{sPTR+15}], s[0:1], 0")
        p("s_cmp_ge_u32 s2, 256")
        p("s_cbranch_scc1 L_end")
        p(f"s_and_b32 s{sT0}, s2, 7\ns_lshr_b32 s{sT1}, s2, 3")
        p(f"s_lshl_b32 s{sH}, s{sT0}, 2\ns_and_b32 s{sT2}, s{sT1}, 3\ns_add_u32 s{sH}, s{sH}, s{sT2}\ns_lshr_b32 s{sB}, s{sT1}, 2")
        p("v_lshrrev_b32 v2, 6, v0\nv_and_b32 v1, 63, v0")
        p(f"v_readfirstlane_b32 s{sROLE}, v2")
        if self.rot:
            p(f"s_lshl_b32 s{sT2}, s{sT2}, 1\ns_add_u32 s{sROT}, s{sB}, s{sT2}\ns_cmp_ge_u32 s{sROT}, 9\ns_cselect_b32 s{sT3}, 9, 0\ns_sub_u32 s{sROT}, s{sROT}, s{sT3}")
        else:
            p(f"s_mov_b32 s{sROT}, 0")
        p(f"s_lshl_b32 s{sID}, s{sB}, 5\ns_add_u32 s{sID}, s{sID}, s{sH}")
        p(f"s_and_b32 s{sW}, s{sROLE}, 3")
        p(f"s_lshl_b32 s{sLDSW}, s{sW}, 12")
        if self.ldfirst:
            p(f"s_cmp_lt_u32 s{sROLE}, 4")
            p("s_cbranch_scc1 L_compute")
        else:
            p(f"s_cmp_ge_u32 s{sROLE}, 4")
            p("s_cbranch_scc1 L_loader")
    def prologue_d(self):
        p = self.d
        l = 'v1'
        p(f"v_lshrrev_b32 v2, 3, {l}")
        p(f"s_lshl_b32 s{sT0}, s{sW}, 5")
        p(f"v_add_u32 v2, s{sT0}, v2")
        p(f"v_mul_u32_u24 v2, 1152, v2")
        p(f"v_lshrrev_b32 v3, 4, {l}")
        p(f"v_and_b32 v4, 7, {l}")
        p(f"v_xor_b32 v5, v3, v4\nv_lshl_add_u32 v{dXG}, v5, 4, v2")
        p(f"v_xor_b32 v5, 4, v5\nv_lshl_add_u32 v5, v5, 4, v2")
        p(f"v_add_u32 v{dXG+1}, {8192}, v5")
        p(f"v_add_u32 v{dXG+2}, {16384}, v{dXG}")
        p(f"v_add_u32 v{dXG+3}, {24576}, v5")
        p(f"s_lshl_b32 s{sT0}, s{sW}, 4")
        p(f"v_add_u32 v2, s{sT0}, v3")
        p(f"v_and_b32 v4, 15, {l}")
        p(f"v_lshlrev_b32 v5, 2, v3")
        p(f"v_xor_b32 v5, v5, v4")
        p(f"v_lshlrev_b32 v5, 4, v5")
        p(f"v_lshl_add_u32 v{dWG}, v2, 13, v5")
        for j in range(1, 4):
            p(f"v_add_u32 v{dWG+j}, {j*(4*8192-1024)}, v{dWG}")
        p(f"v_lshlrev_b32 v6, 8, v2")
        p(f"v_add_u32 v{dVG}, v6, v5")
        p(f"v_xor_b32 v5, v3, v4")
        for j in range(4):
            if j: p(f"v_xor_b32 v7, {4*j}, v5\nv_lshl_add_u32 v{dKG+j}, v7, 4, v6")
            else: p(f"v_lshl_add_u32 v{dKG}, v5, 4, v6")
        p(f"v_lshlrev_b32 v{dLW}, 4, {l}")
        p(f"v_add_u32 v{dLW}, s{sLDSW}, v{dLW}")
        if self.rotk == 1:
            p(f"s_and_b32 s{sT0}, s{sH}, 3\ns_lshl_b32 s{sT0}, s{sT0}, 1\ns_add_u32 s{sT0}, s{sT0}, s{sB}\ns_lshr_b32 s{sT1}, s{sH}, 2\ns_add_u32 s{sROTK}, s{sT0}, s{sT1}")
        elif self.rotk == 2:
            p(f"s_add_u32 s{sROTK}, s{sB}, s{sH}")
        elif self.rotk == 3:
            p(f"s_lshr_b32 s{sROTK}, s{sID}, 0\ns_mul_i32 s{sROTK}, s{sROTK}, 3")
        p.wait_lgkm(0)
        self.srds(p)
    def srds(self, p, which="XWKVO"):
        X, K, V, WQ, WO, OUT, DBG, WS = [sPTR + 2*i for i in range(8)]
        if 'X' in which:
            p(f"s_mul_i32 s{sT0}, s{sB}, 147456")
            p(f"s_add_u32 s{SRD_X}, s{X}, s{sT0}\ns_addc_u32 s{SRD_X+1}, s{X+1}, 0\ns_mov_b32 s{SRD_X+2}, 147456\ns_mov_b32 s{SRD_X+3}, 0x20000")
        if 'W' in which:
            p(f"s_lshl_b32 s{sT0}, s{sH}, 8")
            p(f"s_add_u32 s{SRD_WQ}, s{WQ}, s{sT0}\ns_addc_u32 s{SRD_WQ+1}, s{WQ+1}, 0\ns_sub_u32 s{SRD_WQ+2}, 4718592, s{sT0}\ns_mov_b32 s{SRD_WQ+3}, 0x20000")
        p(f"s_lshl_b32 s{sT0}, s{sB}, 5\ns_add_u32 s{sT0}, s{sT0}, s{sH}")
        if 'K' in which:
            p(f"s_lshl_b32 s{sT1}, s{sT0}, 17")
            if self.samekv: p(f"s_mov_b32 s{sT1}, 0")
            p(f"s_add_u32 s{SRD_K}, s{K}, s{sT1}\ns_addc_u32 s{SRD_K+1}, s{K+1}, 0\ns_mov_b32 s{SRD_K+2}, 131072\ns_mov_b32 s{SRD_K+3}, 0x20000")
            p(f"s_add_u32 s{SRD_V}, s{V}, s{sT1}\ns_addc_u32 s{SRD_V+1}, s{V+1}, 0\ns_mov_b32 s{SRD_V+2}, 131072\ns_mov_b32 s{SRD_V+3}, 0x20000")
        if 'O' in which:
            p(f"s_lshl_b32 s{sT1}, s{sT0}, 15")
            p(f"s_add_u32 s{SRD_O}, s{WS}, s{sT1}\ns_addc_u32 s{SRD_O+1}, s{WS+1}, 0\ns_mov_b32 s{SRD_O+2}, 32768\ns_mov_b32 s{SRD_O+3}, 0x20000")
    def prologue_c(self):
        p = self.p
        l = 'v1'
        p(f"s_mov_b32 s{sC}, {f2u(SCALE_C):#x}")
        p(f"s_mov_b32 s{sTHR}, {f2u(self.thr):#x}")
        p(f"v_and_b32 v2, 31, {l}")
        p(f"v_lshrrev_b32 v3, 5, {l}")
        p(f"v_bfe_u32 v4, v2, 1, 3")
        p(f"v_xor_b32 v4, v4, v3")
        p(f"v_lshlrev_b32 v4, 4, v4")
        p(f"v_lshlrev_b32 v5, 7, v2")
        p(f"v_add_u32 v5, s{sLDSW}, v5")
        for s in range(4):
            p(f"v_xor_b32 v6, {32*s}, v4")
            p(f"v_add_u32 v{vXR+s}, v5, v6")
            p(f"v_add_u32 v{vXR+4+s}, 65536, v{vXR+s}\nv_add_u32 v{vXR+8+s}, 131072, v{vXR+s}")
        p(f"v_and_b32 v4, 15, v2")
        p(f"v_xor_b32 v4, v4, v3")
        p(f"v_lshlrev_b32 v4, 4, v4")
        p(f"v_lshlrev_b32 v5, 8, v2")
        for ks in range(8):
            p(f"v_xor_b32 v6, {32*ks}, v4")
            p(f"v_add_u32 v{vKR+ks}, v5, v6")
        p(f"v_bfe_u32 v2, {l}, 4, 1")
        p(f"v_bfe_u32 v4, {l}, 2, 2")
        p(f"v_and_b32 v5, 3, {l}")
        p(f"v_and_b32 v6, 1, v5\nv_lshlrev_b32 v6, 1, v6\nv_lshrrev_b32 v7, 1, v5\nv_or_b32 v6, v6, v7")
        p(f"v_lshl_add_u32 v6, v2, 2, v6")
        p(f"v_lshlrev_b32 v6, 3, v6")
        p(f"v_lshl_add_u32 v7, v3, 3, v4")
        p(f"v_lshl_add_u32 v6, v7, 8, v6")
        for db in range(4):
            p(f"v_xor_b32 v7, {db}, v4")
            p(f"v_lshl_add_u32 v{vWR+db}, v7, 6, v6")
            p(f"v_add_u32 v{vWR+4+db}, 65536, v{vWR+db}\nv_add_u32 v{vWR+8+db}, 131072, v{vWR+db}")
        p(f"v_lshl_add_u32 v6, v2, 2, v5")
        p(f"v_lshlrev_b32 v6, 3, v6")
        p(f"v_lshl_add_u32 v7, v3, 2, v4")
        p(f"v_lshl_add_u32 v6, v7, 8, v6")
        for db in range(4):
            p(f"v_xor_b32 v7, {db}, v4")
            p(f"v_lshl_add_u32 v{vVR+db}, v7, 6, v6")
            p(f"v_add_u32 v{vVR2+db}, 131072, v{vVR+db}\nv_add_u32 v{vVR+db}, 65536, v{vVR+db}")
        p.wait_lgkm(0)
        self.srds(p, "O")
    def d_issue(self, name):
        d = self.d
        kind, idx = name[0], int(name[1:])
        staged = name in self.stage
        if staged:
            r = self.stgfree.pop(0); self.stg[name] = r
        else:
            slot = self.alloc(name); self.slot[name] = slot
        self.inflight.append(name); self.issued_at[name] = self.cur_k
        if kind in 'XW':
            d(f"s_add_u32 s{sT0}, s{sROT}, {idx}\ns_cmp_ge_u32 s{sT0}, 9\ns_cselect_b32 s{sT1}, 9, 0\ns_sub_u32 s{sT0}, s{sT0}, s{sT1}")
            d(f"s_lshl_b32 s{sSOF}, s{sT0}, {7 if kind == 'X' else 19}")
            srd, nt = (SRD_X, self.wnt) if kind == 'X' else (SRD_WQ, self.wnt)
            vbs = [(dXG if kind == 'X' else dWG) + j for j in range(4)]
        else:
            if self.rotk:
                d(f"s_add_u32 s{sSOF}, s{sROTK}, {idx}\ns_and_b32 s{sSOF}, s{sSOF}, 7\ns_lshl_b32 s{sSOF}, s{sSOF}, 14")
            else:
                d(f"s_mov_b32 s{sSOF}, {idx*TILE}")
            srd, nt = (SRD_K, self.hnt) if kind == 'K' else (SRD_V, self.hnt)
            vbs = [dKG + j for j in range(4)] if kind == 'K' else [dVG]*4
        if staged:
            for j in range(4):
                d(f"buffer_load_dwordx4 v[{r+4*j}:{r+4*j+3}], v{vbs[j]}, s[{srd}:{srd+3}], s{sSOF} offen offset:{j*1024} {nt}", tag=name)
        else:
            d(f"s_add_u32 m0, s{sLDSW}, {slot*TILE}")
            for j in range(4):
                d(f"buffer_load_dwordx4 v{vbs[j]}, s[{srd}:{srd+3}], s{sSOF} offen offset:{j*1024} {nt} lds", tag=name)
    VSLOT = [8, 9, 4, 5, 6, 7, 8, 9]
    def fixed(self, name):
        k, i = name[0], int(name[1:])
        if k == 'X': return (2*i) % 10
        if k == 'W': return (2*i + 1) % 10
        if k == 'K': return i % 4
        return self.VSLOT[i]
    def can_alloc(self, name): return self.fixed(name) in self.free
    def alloc(self, name):
        x = self.fixed(name); assert x in self.free, (name, x, self.free)
        self.free.remove(x); return x
    WO_SLOTS = {0: (4, 5, 6), 1: (0, 1, 2), 2: (3,), 3: (7, 8)}
    def try_wo(self):
        if self.nowo: return
        if any(t[0] in 'KV' for t in self.stream): return
        lim = 4 if self.wo_stage_at else 3
        while self.wo_next < lim and all(x in self.free for x in self.WO_SLOTS[self.wo_next]):
            for x in self.WO_SLOTS[self.wo_next]: self.free.remove(x)
            if self.wo_next in self.wo_staged: self.wo_commit(self.wo_next)
            else: self.wo_issue(self.wo_next)
            self.wo_next += 1
    def d_commit(self, name):
        d = self.d
        slot = self.alloc(name); self.slot[name] = slot
        r = self.stg.pop(name)
        base = slot*TILE
        if base + 4096 > 65536:
            d(f"v_add_u32 v2, {base}, v{dLW}"); a = 'v2'; base = 0
        else: a = f"v{dLW}"
        for j in range(4):
            d(f"ds_write_b128 {a}, v[{r+4*j}:{r+4*j+3}] offset:{base + j*1024}")
        self.stgfree.append(r)
        self.committed.append(name)
        if name in self.inflight:
            self.inflight = self.inflight[self.inflight.index(name)+1:]
    def pump(self, k):
        self.cur_k = k
        if self.plan is not None and k in self.plan:
            for op in self.plan[k]:
                if op[0] == '!': self.d_commit(op[1:])
                else:
                    assert self.stream[0] == op, (self.stream[0], op)
                    self.d_issue(self.stream.pop(0))
            for fn in self.extra.get(k, []): fn()
            return
        if self.plan is not None and k <= max(self.plan): return
        while self.stream:
            nxt = self.stream[0]
            if len(self.inflight) >= self.fly_sched.get(k, self.flyh): break
            if nxt in self.stage:
                if not self.stgfree: break
            elif not self.can_alloc(nxt): break
            self.d_issue(self.stream.pop(0))
        for t in [t for t in self.order if t in self.stg]:
            if k - self.issued_at[t] >= 2 and self.can_alloc(t): self.d_commit(t)
        for fn in self.extra.get(k, []): fn()
        self.try_wo()
    def sync(self, need, release, drain=False):
        p, d = self.p, self.d
        if drain: p.wait_lgkm(0)
        for n in need:
            if n in self.stg: self.d_commit(n)
            assert n in self.slot, n
        d.wait_vm_tag(need)
        if any(n in self.committed for n in need) or (self.committed and not self.lazy_commit):
            d.wait_lgkm(0); self.committed = []
        last = max([self.inflight.index(n) if n in self.inflight else -1 for n in need] + [-1])
        self.inflight = self.inflight[last+1:]
        if self.stamps == 'arr' and self.nsync < 12:
            self.stamp(); self.stamp_d()
        if self.stamps == 'arr2' and self.nsync >= 7:
            self.stamp(); self.stamp_d()
        if self.stamps == 'arr3' and 10 <= self.nsync <= 16:
            self.stamp(); self.stamp_d()
        p("s_barrier"); d("s_barrier")
        if self.stamps == 'd': self.stamp_d()
        for r in release:
            self.free.append(self.slot.pop(r))
        self.pump(self.nsync)
        if self.stamps == 'arr3' and 10 <= self.nsync <= 16: self.stamp_d()
        self.nsync += 1
    def win(self, base, slot):
        w = slot // 4
        return base + 4*w, (slot % 4) * TILE
    def q_read_list(self, n):
        c, s = n // 4, n % 4
        xb, xo = self.xa; wb, wo = self.wa
        A = vQF + 20*(n % 3); B = A + 16
        r = [f"ds_read_b128 v[{B}:{B+3}], v{xb+s} offset:{xo}"]
        for db in range(4):
            r.append(f"ds_read_b64_tr_b16 v[{A+4*db}:{A+4*db+1}], v{wb+db} offset:{wo + s*4096}")
            r.append(f"ds_read_b64_tr_b16 v[{A+4*db+2}:{A+4*db+3}], v{wb+db} offset:{wo + s*4096 + 1024}")
        return r
    def q_sync(self, c):
        if self.qdrain:
            rel = [f"X{c-1}", f"W{c-1}"] if c > 0 else []
            self.sync([f"X{c}", f"W{c}"], rel, drain=True)
        else:
            rel = [f"X{c-2}", f"W{c-2}"] if c > 1 else []
            self.sync([f"X{c}", f"W{c}"], rel)
        if self.stamps == 'q': self.stamp()
        if not self.noflag and not self.nonce_late and c == 3: self.nonce_b()
        if not self.noflag and c == 5 and self.sent: self.p.wait_vm(0)
        if not self.noflag and not self.nonce_late and c == 6: self.nonce_c()
        self.xa = self.win(vXR, self.slot[f"X{c}"]); self.wa = self.win(vWR, self.slot[f"W{c}"])
    def q_phase(self):
        p = self.p
        QD = self.qpd
        self.q_sync(0)
        self.stamp()
        for n in range(QD):
            for r in self.q_read_list(n): p(r)
        for n in range(36):
            nxt = []
            if n + QD < 36:
                if (n + QD) % 4 == 0: self.q_sync((n + QD) // 4)
                nxt = self.q_read_list(n + QD)
            A = vQF + 20*(n % 3); B = A + 16
            rd = {0: nxt[0:3], 1: nxt[3:5], 2: nxt[5:7], 3: nxt[7:9]} if nxt else {}
            for db in range(4):
                acc = f"v[{vACC+16*db}:{vACC+16*db+15}]"
                c = "0" if n == 0 else acc
                if db % 2 == 0 and self.wpair:
                    p.need([f"v{r}" for r in range(B, B+4)] + [f"v{r}" for r in range(A+4*db, A+4*db+8)])
                p(f"v_mfma_f32_32x32x16_bf16 {acc}, v[{A+4*db}:{A+4*db+3}], v[{B}:{B+3}], {c}")
                for r in rd.get(db, []): p(r)
    def q_pack_list(self):
        out = []
        for db in range(4):
            for i in range(16):
                out.append(f"v_mul_f32 v{vACC+16*db+i}, s{sC}, v{vACC+16*db+i}")
            for sp in range(2):
                for i in range(4):
                    r = vACC + 16*db + 8*sp + 2*i
                    out.append(f"v_cvt_pk_bf16_f32 v{vQP + 4*(2*db+sp) + i}, v{r}, v{r+1}")
        return out
    def kread(self, f, j, ks):
        b, o = self.kaddr[j // 2]
        buf = aFR + 4*(f % 8)
        return [f"ds_read_b128 a[{buf}:{buf+3}], v{b+ks} offset:{o + (j % 2)*8192}"]
    def vread(self, f, j, m):
        b, o = self.vaddr[j // 2]
        tt, db = m // 4, m % 4
        s = 2*(j % 2) + tt
        buf = aFR + 4*(f % 8)
        return [f"ds_read_b64_tr_b16 a[{buf}:{buf+1}], v{b+db} offset:{o + s*4096}",
                f"ds_read_b64_tr_b16 a[{buf+2}:{buf+3}], v{b+db} offset:{o + s*4096 + 2048}"]
    def sm_core(self, j):
        S = vS + 16*(j & 1); P = vP + 8*(j & 1); E = vE
        T0, T1 = vT, vT + 1
        L = []
        def ex(i): L.append((f"v_exp_f32 v{E+i}, v{S+i}", 2))
        def adds(g):
            i = 4*g
            if g == 0:
                L.append((f"v_add_f32 v{T0}, v{E}, v{E+1}", 1)); L.append((f"v_add_f32 v{T1}, v{E+2}, v{E+3}", 1))
            else:
                L.append((f"v_add_f32 v{T0}, v{T0}, v{E+i}", 1)); L.append((f"v_add_f32 v{T1}, v{T1}, v{E+i+1}", 1))
                L.append((f"v_add_f32 v{T0}, v{T0}, v{E+i+2}", 1)); L.append((f"v_add_f32 v{T1}, v{T1}, v{E+i+3}", 1))
        def cvts(g):
            i = 4*g
            L.append((f"v_cvt_pk_bf16_f32 v{P+2*g}, v{E+i}, v{E+i+1}", 1))
            L.append((f"v_cvt_pk_bf16_f32 v{P+2*g+1}, v{E+i+2}, v{E+i+3}", 1))
        for g in range(4):
            for i in range(4): ex(4*g + i)
            if g >= 1:
                adds(g - 1)
                if g <= 2: cvts(g - 1)
        adds(3)
        L.append((f"v_add_f32 v{T0}, v{T0}, v{T1}", 1))
        L.append((f"v_cmp_nge_f32 vcc, s{sTHR}, v{T0}", 1))
        cvts(2); cvts(3)
        return L
    def rowmax(self, p, S, dst, tmp):
        p(f"v_max3_f32 v{dst}, v{S}, v{S+1}, v{S+2}")
        p(f"v_max3_f32 v{tmp}, v{S+3}, v{S+4}, v{S+5}")
        for k, i in enumerate(range(6, 16, 2)):
            d = dst if k % 2 == 0 else tmp
            p(f"v_max3_f32 v{d}, v{d}, v{S+i}, v{S+i+1}")
        p(f"v_max_f32 v{dst}, v{dst}, v{tmp}")
        p(f"v_mov_b32 v{tmp}, v{dst}")
        p(f"v_permlane32_swap_b32 v{dst}, v{tmp}")
        p(f"v_max_f32 v{dst}, v{dst}, v{tmp}")
    def check(self, j):
        p = self.p
        p(f"s_cbranch_vccnz L_rare{j}")
        p.label(f"L_back{j}")
        if j == 0: p(f"v_mov_b32 v{vL}, v{vT}")
        else: p(f"v_add_f32 v{vL}, v{vL}, v{vT}")
        self.rare.append(j)
    def emit_rare(self):
        out = []
        for j in self.rare:
            q = Prog()
            q.label(f"L_rare{j}")
            q.nop(16)
            S = vS + 16*(j & 1); S2 = vS + 16*((j + 1) & 1)
            T2, T3 = vT + 2, vT + 3
            self.rowmax(q, S, T2, T3)
            q(f"v_max_f32 v{T2}, 0, v{T2}")
            q(f"v_exp_f32 v{vAL}, -v{T2}")
            for i in range(16): q(f"v_sub_f32 v{S+i}, v{S+i}, v{T2}")
            if j + 1 < 16:
                for i in range(16): q(f"v_sub_f32 v{S2+i}, v{S2+i}, v{T2}")
            for i in range(16): q(f"v_sub_f32 v{vNEG+i}, v{vNEG+i}, v{T2}")
            if j > 0:
                q(f"v_mul_f32 v{vL}, v{vAL}, v{vL}")
                for i in range(64): q(f"v_mul_f32 v{vACC+i}, v{vAL}, v{vACC+i}")
            if self.endopt and j == 15:
                P14 = vP + 8*(14 & 1)
                for i in range(8):
                    q(f"v_lshlrev_b32 v{vE}, 16, v{P14+i}\nv_and_b32 v{vE+1}, 0xffff0000, v{P14+i}")
                    q(f"v_mul_f32 v{vE}, v{vAL}, v{vE}\nv_mul_f32 v{vE+1}, v{vAL}, v{vE+1}")
                    q(f"v_cvt_pk_bf16_f32 v{P14+i}, v{vE}, v{vE+1}")
            for t, _ in self.sm_core(j): q(t)
            q.nop(4)
            q(f"s_branch L_back{j}")
            out += q.out
        return out
    def attention(self):
        p = self.p; PD = self.PD
        NB = 16
        self.kaddr = {}; self.vaddr = {}
        def setk(t):
            sl = self.slot[f"K{t}"]; assert sl < 4
            self.kaddr[t] = (vKR, sl*TILE); return []
        def setv(t):
            sl = self.slot[f"V{t}"]; assert sl >= 4
            self.vaddr[t] = (vVR, (sl-4)*TILE) if sl < 8 else (vVR2, (sl-8)*TILE); return []
        seq = [('K', 0, ks) for ks in range(8)]
        bounds = {}
        for j in range(NB):
            st = len(seq)
            if j + 1 < NB: seq += [('K', j + 1, ks) for ks in range(8)]
            if j >= 1 and not (self.endopt and j == NB - 1): seq += [('V', j - 1, m) for m in range(8)]
            bounds[j] = (st, len(seq))
        st = len(seq)
        if self.endopt:
            for db in range(4): seq += [('V', 14, db), ('V', 14, 4 + db), ('V', 15, db), ('V', 15, 4 + db)]
        else:
            seq += [('V', NB - 1, m) for m in range(8)]
        bounds[NB] = (st, len(seq))
        fin0 = st
        def mf_text(f):
            kind, j, m = seq[f]
            buf = aFR + 4*(f % 8)
            if kind == 'K':
                acc = f"v[{vS+16*(j&1)}:{vS+16*(j&1)+15}]"
                c = acc if m > 0 else ("0" if j == 0 else f"v[{vNEG}:{vNEG+15}]")
                return f"v_mfma_f32_32x32x16_bf16 {acc}, a[{buf}:{buf+3}], v[{vQP+4*m}:{vQP+4*m+3}], {c}"
            tt, db = m // 4, m % 4
            acc = f"v[{vACC+16*db}:{vACC+16*db+15}]"
            c = "0" if (j == 0 and tt == 0) else acc
            P = vP + 8*(j & 1) + 4*tt
            return f"v_mfma_f32_32x32x16_bf16 {acc}, a[{buf}:{buf+3}], v[{P}:{P+3}], {c}"
        def tile_of(f):
            kind, j, m = seq[f]; return f"{kind}{j//2}"
        first = {}; lastf = {}
        for f in range(len(seq)):
            first.setdefault(tile_of(f), f); lastf[tile_of(f)] = f
        done_tiles = ["X7", "W7", "X8", "W8"]
        synced = set()
        def do_reads(f):
            t = tile_of(f)
            if first[t] == f and t not in synced:
                need = [t]
                for t2, f2 in first.items():
                    if t2 not in synced and t2 != t and f < f2 <= f + 8: need.append(t2)
                rel = [x for x in self.slot if x in lastf and lastf[x] <= f - PD - 1 and f - PD - 1 >= 0] + [x for x in done_tiles if x in self.slot]
                self.sync(need, rel)
                for n in need:
                    synced.add(n)
                    for i in (setk(int(n[1:])) if n[0] == 'K' else setv(int(n[1:]))): p(i)
                if self.stamps == 'a': self.stamp()
            kind, j, m = seq[f]
            for x in (self.kread(f, j, m) if kind == 'K' else self.vread(f, j, m)): p(x)
        for f in range(PD): do_reads(f)
        for t in self.q_pack_list(): p(t)
        def run(f0, f1, fillers, rdlim=None):
            rdlim = len(seq) if rdlim is None else rdlim
            n = f1 - f0
            tot = sum(c for _, c in fillers); fi = 0; acc = 0.0
            for f in range(f0, f1):
                if f % self.wgrp == 0:
                    p.need([f"a{aFR + 4*(g % 8) + r}" for g in range(f, f + self.wgrp) for r in range(4)])
                p(mf_text(f))
                if f + PD < rdlim: do_reads(f + PD)
                target = tot * (f - f0 + 1) / n
                while fi < len(fillers) and acc + fillers[fi][1]*0.5 <= target + 1e-9:
                    emit1(p, fillers[fi][0]); acc += fillers[fi][1]; fi += 1
            while fi < len(fillers):
                emit1(p, fillers[fi][0]); fi += 1
        run(0, 8, [])
        self.rowmax(p, vS, vM, vT + 3)
        p(f"v_sub_f32 v{vNEG}, 0, v{vM}")
        for i in range(1, 16): p(f"v_mov_b32 v{vNEG+i}, v{vNEG}")
        for i in range(16): p(f"v_sub_f32 v{vS+i}, v{vS+i}, v{vM}")
        for j in range(NB):
            f0, f1 = bounds[j]
            if self.endopt and j == NB - 1:
                for t, _ in self.sm_core(j): p(t)
            else:
                run(f0, f1, self.sm_core(j), rdlim=(fin0 if self.endopt else None))
            self.check(j)
            if self.nonce_late and not self.noflag:
                if j == 1: self.nonce_b()
                if j == 3: self.nonce_c()
            if j == 10 and not self.noflag: self.decide_a()
            if j == 13 and not self.noflag: self.decide_b()
            if self.stamps == 'a' and j % 2 == 1: self.stamp()
        if not self.endopt:
            run(*bounds[NB], [])
            return
        self.epi_pre()
        for i in range(4): p(f"v_mov_b32 v{vQP+i}, v{vVR2+i}")
        for f in range(fin0, fin0 + PD):
            do_reads(f)
            if f == fin0:
                assert self.slot["V7"] >= 8
                self.vaddr[7] = (vQP, self.vaddr[7][1])
        pend = []
        for f in range(fin0, len(seq)):
            if (f - fin0) % self.wgrp == 0:
                p.need([f"a{aFR + 4*(g % 8) + r}" for g in range(f, f + self.wgrp) for r in range(4)])
            p(mf_text(f))
            if f + PD < len(seq): do_reads(f + PD)
            i = f - fin0
            if i % 4 == 0 and i >= 4: pend = self.epi_db(i // 4 - 1)
            take = -(-len(pend) // (4 - i % 4)) if pend else 0
            for t in pend[:take]: emit1(p, t)
            pend = pend[take:]
        for t in self.epi_db(3): emit1(p, t)
    def flag_srd(self, p):
        WS = sPTR + 14
        p(f"s_add_u32 s{SRD_FLG}, s{WS}, {WS_FLAG}\ns_addc_u32 s{SRD_FLG+1}, s{WS+1}, 0\ns_mov_b32 s{SRD_FLG+2}, 98304\ns_mov_b32 s{SRD_FLG+3}, 0x20000")
    def nonce_a(self):
        p = self.p
        DBG = sPTR + 12
        lab = "L_nononce"
        self.flag_srd(p)
        p(f"s_getreg_b32 s{sXW}, hwreg(HW_REG_XCC_ID)\ns_and_b32 s{sXW}, s{sXW}, 0xff")
        p(f"s_mov_b32 s{sFAST}, 0\ns_mov_b32 s{sRDY}, 0")
        if self.sent:
            WS = sPTR + 14
            p(f"s_and_b32 s{sJ}, s{sH}, 3\ns_lshr_b32 s{sT0}, s{sH}, 2")
            p(f"s_lshl_b32 s{sT1}, s{sB}, 2\ns_add_u32 s{sT1}, s{sT1}, s{sJ}\ns_lshl_b32 s{sT1}, s{sT1}, 3\ns_add_u32 s{sT1}, s{sT1}, s{sT0}\ns_mul_i32 s{sT1}, s{sT1}, 36864\ns_add_u32 s{sT1}, s{sT1}, {WS_PART}")
            p(f"s_add_u32 s{SRD_P}, s{WS}, s{sT1}\ns_addc_u32 s{SRD_P+1}, s{WS+1}, 0\ns_mov_b32 s{SRD_P+2}, 36864\ns_mov_b32 s{SRD_P+3}, 0x20000")
            p(f"v_lshlrev_b32 v2, 4, v1\ns_mul_i32 s{sT0}, s{sW}, {9*1024}\nv_add_u32 v2, s{sT0}, v2")
            for r in range(4): p(f"v_mov_b32 v{4+r}, -1")
            for nb in range(9):
                p(f"s_mov_b32 s35, {(nb//4)*4096}")
                p(f"buffer_store_dwordx4 v[4:7], v2, s[{SRD_P}:{SRD_P+3}], s35 offen offset:{(nb%4)*1024} sc1", tag='fill')
        p(f"s_or_b32 s{sT0}, s{sID}, s{sW}\ns_cmp_lg_u32 s{sT0}, 0\ns_cbranch_scc1 {lab}")
        p.raw("    s_memrealtime s[30:31]")
        p.raw("    s_waitcnt lgkmcnt(0)")
        p("s_or_b32 s30, s30, 1")
        p("v_mov_b32 v2, 4\nv_mov_b32 v3, s30")
        p("s_mov_b64 exec, 1")
        p.raw(f"    global_store_dword v2, v3, s[{DBG}:{DBG+1}] sc1")
        p("s_mov_b64 exec, -1")
        p.label(lab)
        p.nop(2)
    def nonce_b(self):
        p = self.p
        DBG = sPTR + 12
        p("v_mov_b32 v4, 4")
        p(f"global_load_dword v2, v4, s[{DBG}:{DBG+1}]", tag='non')
    def nonce_c(self):
        p = self.p
        DBG = sPTR + 12
        lab = "L_nonok"; lp = "L_nonpoll"
        p(f"v_readfirstlane_b32 s{sNON}, v2")
        p(f"s_cmp_lg_u32 s{sNON}, 0\ns_cbranch_scc1 {lab}")
        p(f"s_mov_b32 s{sT3}, {self.spin_max}")
        p.label(lp)
        p.raw(f"    global_load_dword v2, v4, s[{DBG}:{DBG+1}] sc1")
        p.raw("    s_waitcnt vmcnt(0)")
        p.raw(f"    v_readfirstlane_b32 s{sNON}, v2")
        p.raw("    s_nop 3")
        p(f"s_cmp_lg_u32 s{sNON}, 0\ns_cbranch_scc1 {lab}")
        p(f"s_sub_u32 s{sT3}, s{sT3}, 1\ns_cmp_lg_u32 s{sT3}, 0\ns_cbranch_scc1 {lp}")
        p.label(lab)
        p.nop(4)
        l2 = "L_noxw"
        p(f"s_cmp_lg_u32 s{sW}, 0\ns_cbranch_scc1 {l2}")
        p(f"s_lshl_b32 s{sT0}, s{sID}, 7\ns_add_u32 s{sT0}, s{sT0}, 65536")
        p(f"v_mov_b32 v2, s{sNON}\nv_mov_b32 v3, s{sXW}")
        p.raw(f"    buffer_store_dwordx2 v[2:3], off, s[{SRD_FLG}:{SRD_FLG+3}], s{sT0} sc1")
        p.label(l2)
        p.nop(2)
    def decide_a(self):
        p = self.p
        p(f"s_and_b32 s{sT0}, s{sID}, {~3 & 0xffffffff:#x}\nv_and_b32 v4, 3, v1\nv_add_u32 v4, s{sT0}, v4\nv_lshlrev_b32 v4, 7, v4\nv_add_u32 v4, 65536, v4")
        p(f"buffer_load_dwordx2 v[2:3], v4, s[{SRD_FLG}:{SRD_FLG+3}], 0 offen sc1", tag='dec')
        if self.sent:
            p(f"s_and_b32 s{sT1}, s{sH}, 3\ns_lshl_b32 s{sT0}, s{sB}, 5\ns_add_u32 s{sT0}, s{sT0}, s{sT1}\nv_and_b32 v5, 7, v1\nv_lshlrev_b32 v5, 2, v5\nv_add_u32 v5, s{sT0}, v5\nv_lshlrev_b32 v5, 7, v5\nv_add_u32 v5, 65536, v5")
            p(f"buffer_load_dword v6, v5, s[{SRD_FLG}:{SRD_FLG+3}], 0 offen sc1", tag='dec')
    def decide_b(self):
        p = self.p
        p(f"v_cmp_ne_u32 vcc, s{sNON}, v2")
        p.nop(2)
        p(f"s_cmp_eq_u64 vcc, 0\ns_cselect_b32 s{sFAST}, 1, 0")
        p(f"v_cmp_ne_u32 vcc, s{sXW}, v3")
        p.nop(2)
        p(f"s_cmp_eq_u64 vcc, 0\ns_cselect_b32 s{sFAST}, s{sFAST}, 0")
        if self.nofast: p(f"s_mov_b32 s{sFAST}, 0")
        if self.sent:
            p(f"v_cmp_ne_u32 vcc, s{sNON}, v6")
            p.nop(2)
            p(f"s_cmp_eq_u64 vcc, 0\ns_cselect_b32 s{sRDY}, 1, 0")
    def poll(self, d, voff, text_load, want, name):
        lab = f"L_poll_{name}"; done = f"L_polld_{name}"
        d(f"s_mov_b32 s{sT3}, {self.spin_max}")
        d.label(lab)
        d.raw("    " + text_load)
        d.raw("    s_waitcnt vmcnt(0)")
        d(f"v_cmp_ne_u32 vcc, {want}, v2")
        d.nop(2)
        d(f"s_cbranch_vccz {done}")
        d(f"s_sub_u32 s{sT3}, s{sT3}, 1\ns_cmp_eq_u32 s{sT3}, 0\ns_cbranch_scc1 {done}")
        if self.poll_sleep: d(f"s_sleep {self.poll_sleep}")
        d(f"s_branch {lab}")
        d.label(done)
        d.vmq = []
    def poll_pipe(self, d, loadfn, want, name, N=4, R=120, gap=4):
        lab = f"L_poll_{name}"; done = f"L_polld_{name}"
        d(f"s_mov_b32 s{sT3}, {self.spin_max}")
        for i in range(N):
            d.raw("    " + loadfn(R + i))
            if i < N - 1: d(f"s_sleep {gap}")
        d.label(lab)
        for i in range(N):
            d.raw(f"    s_waitcnt vmcnt({N-1})")
            d(f"v_cmp_ne_u32 vcc, {want}, v{R+i}")
            d.nop(2)
            d(f"s_cbranch_vccz {done}")
            d.raw("    " + loadfn(R + i))
        d(f"s_sub_u32 s{sT3}, s{sT3}, 1\ns_cmp_lg_u32 s{sT3}, 0\ns_cbranch_scc1 {lab}")
        d.label(done)
        d.vmq = []
    def wo_setup(self):
        d = self.d
        WO = sPTR + 8
        wo_dma_setup(d, dWO, sW)
        d(f"s_lshr_b32 s{sT0}, s{sH}, 2\ns_mul_i32 s{sT1}, s{sT0}, {512*1152}\ns_and_b32 s{sJ}, s{sH}, 3\ns_mul_i32 s{sT2}, s{sJ}, 288\ns_add_u32 s{sT1}, s{sT1}, s{sT2}")
        d(f"s_add_u32 s{SRD_WO}, s{WO}, s{sT1}\ns_addc_u32 s{SRD_WO+1}, s{WO+1}, 0\ns_sub_u32 s{SRD_WO+2}, 4718592, s{sT1}\ns_mov_b32 s{SRD_WO+3}, 0x20000")
    def spf(self, items):
        d = self.d
        if not getattr(self, 'spf_ready', False):
            self.spf_ready = True
            d(f"s_lshl_b32 s{sT0}, s{sW}, 12")
            d(f"s_add_u32 s{sPK}, s{SRD_K}, s{sT0}\ns_addc_u32 s{sPK+1}, s{SRD_K+1}, 0")
            d(f"s_add_u32 s{sPV}, s{SRD_V}, s{sT0}\ns_addc_u32 s{sPV+1}, s{SRD_V+1}, 0")
        for (t, l0, n) in items:
            base = sPK if t[0] == 'K' else sPV
            for i in range(l0, l0 + n):
                d.raw(f"    s_load_dword s{sDUM}, s[{base}:{base+1}], {int(t[1:])*TILE + i*128:#x}")
    def wo_warm(self, offs=None, first=True):
        d = self.d
        if not self.wo_ready: self.wo_setup(); self.wo_ready = True
        offs = self.warm_offs if offs is None else offs
        self.nwarm = getattr(self, 'nwarm', 0) + 1
        lab = f"L_d_nowarm{self.nwarm}" + self.sfx
        d(f"s_cmp_lg_u32 s{sW}, 0\ns_cbranch_scc1 {lab}")
        if self.warm2:
            d(f"s_and_b32 s{sT0}, s{sB}, 3\ns_lshl_b32 s{sT0}, s{sT0}, 7\nv_add_u32 v2, s{sT0}, v1\nv_mul_u32_u24 v2, 1152, v2\nv_add_u32 v3, {64*1152}, v2")
            for off in offs:
                d.raw(f"    buffer_load_dword v31, v2, s[{SRD_WO}:{SRD_WO+3}], 0 offen offset:{off} {self.wont}")
                d.raw(f"    buffer_load_dword v31, v3, s[{SRD_WO}:{SRD_WO+3}], 0 offen offset:{off} {self.wont}")
        else:
            d(f"s_lshl_b32 s{sT0}, s{sB}, 6\nv_add_u32 v2, s{sT0}, v1\nv_mul_u32_u24 v2, 1152, v2")
            for off in offs:
                d.raw(f"    buffer_load_dword v31, v2, s[{SRD_WO}:{SRD_WO+3}], 0 offen offset:{off} {self.wont}")
        d.label(lab)
        d.nop(2)
    def wo_issue(self, i):
        d = self.d
        if not self.wo_ready: self.wo_setup(); self.wo_ready = True
        d(f"s_add_u32 s{sT0}, s{sJ}, {i}\ns_and_b32 s{sT0}, s{sT0}, 3\ns_mul_i32 s{sSOF}, s{sT0}, {128*1152}")
        d(f"s_mul_i32 s36, s{sW}, {9*1024}")
        for t in range(9):
            d(f"s_add_u32 m0, s36, {WOBASE[i] + t*1024}")
            d(f"buffer_load_dwordx4 v{dWO+t}, s[{SRD_WO}:{SRD_WO+3}], s{sSOF} offen {self.wont} lds", tag=f"O{i}")
    WSTG = 32
    def wo_stage(self, i, slotno):
        d = self.d
        if not self.wo_ready: self.wo_setup(); self.wo_ready = True
        d(f"s_add_u32 s{sT0}, s{sJ}, {i}\ns_and_b32 s{sT0}, s{sT0}, 3\ns_mul_i32 s{sSOF}, s{sT0}, {128*1152}")
        r = self.WSTG + 36*slotno
        for t in range(9):
            d(f"buffer_load_dwordx4 v[{r+4*t}:{r+4*t+3}], v{dWO+t}, s[{SRD_WO}:{SRD_WO+3}], s{sSOF} offen {self.wont}", tag=f"O{i}")
        self.wo_staged[i] = r
    def wo_commit(self, i):
        d = self.d
        r = self.wo_staged.pop(i)
        d(f"s_mul_i32 s36, s{sW}, {9*1024}")
        d(f"v_lshlrev_b32 v2, 4, v1\nv_add_u32 v2, s36, v2\nv_add_u32 v2, {WOBASE[i]}, v2")
        for t in range(9):
            d(f"ds_write_b128 v2, v[{r+4*t}:{r+4*t+3}] offset:{t*1024}")
        self.committed.append(f"O{i}")
    def epi_pre(self):
        p = self.p
        M = GMap()
        T0, T1 = 6, 7
        p(f"v_mov_b32 v{T1}, v{vL}")
        p(f"v_permlane32_swap_b32 v{vL}, v{T1}")
        p(f"v_add_f32 v{T0}, v{vL}, v{T1}")
        p(f"v_rcp_f32 v{T0}, v{T0}")
        p(f"v_mov_b32 v4, v{T0}\nv_mov_b32 v5, v{T0}")
        p(f"v_lshlrev_b32 v{M.vGB}, 4, v1")
        p(f"s_lshl_b32 s{sT0}, s{sW}, 13\nv_add_u32 v{M.vGB}, s{sT0}, v{M.vGB}")
        p(f"s_mov_b32 s{sT1}, 4096")
    def epi_db(self, db):
        p = self.p
        M = GMap()
        A = vACC + 16*db
        L = []
        for i in range(0, 16, 2):
            L.append(f"v_pk_mul_f32 v[{A+i}:{A+i+1}], v[{A+i}:{A+i+1}], v[4:5]")
        F0 = M.vB + (db*2)*4; F1 = F0 + 4
        L += [f"v_cvt_pk_bf16_f32 v{F0}, v{A}, v{A+1}", f"v_cvt_pk_bf16_f32 v{F0+1}, v{A+2}, v{A+3}",
              f"v_cvt_pk_bf16_f32 v{F0+2}, v{A+8}, v{A+9}", f"v_cvt_pk_bf16_f32 v{F0+3}, v{A+10}, v{A+11}",
              f"v_cvt_pk_bf16_f32 v{F1}, v{A+4}, v{A+5}", f"v_cvt_pk_bf16_f32 v{F1+1}, v{A+6}, v{A+7}",
              f"v_cvt_pk_bf16_f32 v{F1+2}, v{A+12}, v{A+13}", f"v_cvt_pk_bf16_f32 v{F1+3}, v{A+14}, v{A+15}"]
        L += [f"v_permlane32_swap_b32 v{F0+k}, v{F1+k}" for k in range(4)]
        L += [f"v_permlane16_swap_b32 v{F0+k}, v{F1+k}" for k in range(4)]
        def stores():
            lf = f"L_ost{db}f"; le = f"L_ost{db}e"
            p.nop(2)
            same = (self.ofast == self.safe)
            if not same: p(f"s_cmp_lg_u32 s{sFAST}, 0\ns_cbranch_scc1 {lf}")
            first = True
            for aux in ((self.safe,) if same else (self.safe, self.ofast)):
                p.raw(f"    buffer_store_dwordx4 v[{F0}:{F0+3}], v{M.vGB}, s[{SRD_O}:{SRD_O+3}], 0 offen offset:{db*1024} {aux}")
                p.raw(f"    buffer_store_dwordx4 v[{F1}:{F1+3}], v{M.vGB}, s[{SRD_O}:{SRD_O+3}], s{sT1} offen offset:{db*1024} {aux}")
                if first and not same: p(f"s_branch {le}"); p.label(lf)
                first = False
            if not same: p.label(le)
            p.vmq.append(('O', set(), set())); p.vmq.append(('O', set(), set()))
        L.append(stores)
        return L
    def epilogue(self):
        if self.endopt: return
        self.epi_pre()
        for db in range(4):
            for t in self.epi_db(db): emit1(self.p, t)
    def tail(self):
        p, d = self.p, self.d
        M = GMap()
        X, K, V, WQ, WO, OUT, DBG, WS = [sPTR + 2*i for i in range(8)]
        def bar():
            p("s_barrier"); d("s_barrier")
        p(f"s_and_b32 s{sJ}, s{sH}, 3")
        p(f"s_lshr_b32 s{sT0}, s{sH}, 2")
        p(f"s_lshl_b32 s{sT1}, s{sB}, 5\ns_lshl_b32 s{sT2}, s{sT0}, 2\ns_add_u32 s{sT1}, s{sT1}, s{sT2}\ns_lshl_b32 s{sT1}, s{sT1}, 15")
        p(f"s_add_u32 s{SRD_OG}, s{WS}, s{sT1}\ns_addc_u32 s{SRD_OG+1}, s{WS+1}, 0\ns_mov_b32 s{SRD_OG+2}, 131072\ns_mov_b32 s{SRD_OG+3}, 0x20000")
        p(f"s_lshl_b32 s{sT1}, s{sB}, 2\ns_add_u32 s{sT1}, s{sT1}, s{sJ}\ns_lshl_b32 s{sT1}, s{sT1}, 3\ns_add_u32 s{sT1}, s{sT1}, s{sT0}\ns_mul_i32 s{sT1}, s{sT1}, 36864\ns_add_u32 s{sT1}, s{sT1}, {WS_PART}")
        p(f"s_add_u32 s{SRD_P}, s{WS}, s{sT1}\ns_addc_u32 s{SRD_P+1}, s{WS+1}, 0\ns_mov_b32 s{SRD_P+2}, 36864\ns_mov_b32 s{SRD_P+3}, 0x20000")
        p("v_and_b32 v2, 15, v1\nv_lshrrev_b32 v3, 4, v1")
        p("v_lshrrev_b32 v4, 2, v2\nv_and_b32 v5, 3, v2")
        p("v_lshl_add_u32 v4, v3, 2, v4\nv_mul_u32_u24 v4, 288, v4\nv_lshl_add_u32 v4, v5, 3, v4")
        for i in range(4): p(f"v_add_u32 v{M.vGA+i}, {WOBASE[i]}, v4")
        g_store_setup(p, M, sW)
        assert self.wo_next >= 1
        def pub_wave():
            p.wait_vm(0)
            lab = "L_pub1e"; lf = "L_pub1f"
            p(f"s_lshl_b32 s{sT0}, s{sID}, 7\ns_lshl_b32 s{sT1}, s{sW}, 2\ns_add_u32 s{sT0}, s{sT0}, s{sT1}\nv_mov_b32 v3, s{sNON}")
            p(f"s_cmp_lg_u32 s{sFAST}, 0\ns_cbranch_scc1 {lf}")
            p.raw(f"    buffer_store_dword v3, off, s[{SRD_FLG}:{SRD_FLG+3}], s{sT0} {self.safe}")
            p(f"s_branch {lab}")
            p.label(lf)
            p.raw(f"    buffer_store_dword v3, off, s[{SRD_FLG}:{SRD_FLG+3}], s{sT0}")
            p.label(lab)
            p.nop(2)
        if self.perwave and self.f0_at < 0: pub_wave()
        p.wait_lgkm(0)
        d.wait_vm_tag(["O0"])
        d.wait_lgkm(0)
        bar()
        self.stamp()
        def f1():
            if self.perwave:
                pub_wave(); return
            p.wait_vm(0)
            bar()
            lab = "L_nopub1"; lf = "L_pub1f"
            p(f"s_cmp_lg_u32 s{sW}, 0\ns_cbranch_scc1 {lab}")
            p(f"s_lshl_b32 s{sT0}, s{sID}, 7\nv_mov_b32 v3, s{sNON}")
            p(f"s_cmp_lg_u32 s{sFAST}, 0\ns_cbranch_scc1 {lf}")
            p.raw(f"    buffer_store_dword v3, off, s[{SRD_FLG}:{SRD_FLG+3}], s{sT0} {self.safe}")
            p(f"s_branch {lab}")
            p.label(lf)
            p.raw(f"    buffer_store_dword v3, off, s[{SRD_FLG}:{SRD_FLG+3}], s{sT0}")
            p.label(lab)
            p.nop(2)
        while self.wo_next < (4 if self.wo_stage_at else 3):
            if self.wo_next in self.wo_staged: self.wo_commit(self.wo_next)
            else: self.wo_issue(self.wo_next)
            self.wo_next += 1
        def pollpos(pos):
            lab = f"L_posok{pos}"
            if pos > 1:
                p(f"s_bitcmp1_b32 s{sRDY}, {pos}\ns_cbranch_scc1 {lab}")
            p(f"s_add_u32 s{sT0}, s{sJ}, 1\nv_and_b32 v4, 3, v1\nv_add_u32 v4, s{sT0}, v4\nv_and_b32 v4, 3, v4\ns_and_b32 s{sT1}, s{sID}, {~3 & 0xffffffff:#x}\nv_add_u32 v4, s{sT1}, v4\nv_lshlrev_b32 v4, 7, v4")
            lp = f"L_pollq{pos}"; ld = f"L_pollqd{pos}"
            p(f"s_mov_b32 s{sT3}, {self.spin_max}")
            p.label(lp)
            p.raw(f"    buffer_load_dword v2, v4, s[{SRD_FLG}:{SRD_FLG+3}], 0 offen sc1")
            p.raw("    s_waitcnt vmcnt(0)")
            p(f"v_cmp_eq_u32 vcc, s{sNON}, v2")
            p.nop(4)
            p(f"s_lshl_b32 s{sRDY}, vcc_lo, 1")
            p(f"s_bitcmp1_b32 s{sRDY}, {pos}\ns_cbranch_scc1 {ld}")
            p(f"s_sub_u32 s{sT3}, s{sT3}, 1\ns_cmp_lg_u32 s{sT3}, 0\ns_cbranch_scc1 {lp}")
            p.label(ld)
            p.label(lab)
            p.nop(2)
        def getB():
            if self.posflag:
                pollpos(1)
                self.stamp()
                loadB(1)
                return
            p(f"s_and_b32 s{sT0}, s{sID}, {~3 & 0xffffffff:#x}\nv_and_b32 v4, 3, v1\nv_add_u32 v4, s{sT0}, v4\nv_lshlrev_b32 v4, 7, v4")
            if self.perwave: p(f"s_lshl_b32 s{sT1}, s{sW}, 2\nv_add_u32 v4, s{sT1}, v4")
            self.poll(p, None, f"buffer_load_dword v2, v4, s[{SRD_FLG}:{SRD_FLG+3}], 0 offen sc1", f"s{sNON}", "f1")
            self.stamp()
            loadB(1)
        def loadB(pos):
            p(f"s_add_u32 s{sT0}, s{sJ}, {pos}\ns_and_b32 s{sT0}, s{sT0}, 3\ns_lshl_b32 s{sT0}, s{sT0}, 15\ns_add_u32 s{sT1}, s{sT0}, 4096")
            lf = f"L_ldB{pos}f"; le = f"L_ldB{pos}e"
            regs = []
            if self.plainB:
                p(f"s_cmp_lg_u32 s{sFAST}, 0\ns_cbranch_scc1 {lf}")
            for aux in ((self.safe, '') if self.plainB else (self.safe,)):
                for db in range(4):
                    for r in range(2):
                        reg = M.vB + ((pos*4 + db)*2 + r)*4
                        p.raw(f"    buffer_load_dwordx4 v[{reg}:{reg+3}], v{M.vGB}, s[{SRD_OG}:{SRD_OG+3}], s{sT1 if r else sT0} offen offset:{db*1024} {aux}")
                if aux and self.plainB:
                    p(f"s_branch {le}"); p.label(lf)
            if self.plainB: p.label(le)
            for db in range(4):
                for r in range(2):
                    reg = M.vB + ((pos*4 + db)*2 + r)*4
                    p.vmq.append((f"B{pos}", {f"v{x}" for x in range(reg, reg+4)}, set()))
        def pre(i):
            if i == 0: return
            if self.stamps == 'g': self.stamp()
            d.wait_vm_tag([f"O{i}"])
            d.wait_lgkm(0)
            bar()
            if self.stamps == 'g': self.stamp()
        def b2():
            if self.posflag: pollpos(2)
            loadB(2)
        def b3():
            if self.posflag: pollpos(3)
            loadB(3)
            if self.wo_next < 4:
                bar()
                self.wo_issue(3); self.wo_next = 4
        hk = {(self.f0_at if self.f0_at >= 0 else -1): f1, self.f1_at: getB, 36 + self.b_at: b2, 36 + self.b_at2: b3}
        if self.stamps == 'g1':
            def wrap2(fn):
                def g():
                    self.stamp(); fn(); self.stamp()
                return g
            hk[36 + self.b_at] = wrap2(hk[36 + self.b_at]); hk[36 + self.b_at2] = wrap2(hk[36 + self.b_at2])
            hk[36] = self.stamp; hk[37] = self.stamp; hk[45] = self.stamp; hk[60] = self.stamp; hk[72] = self.stamp
        tmp = [M.vB, M.vB + 12]
        cnt = [0]
        def fin(nb):
            g_store_block(p, M, SRD_P, nb, tmp[cnt[0] & 1], aux=(self.psc or self.safe)); cnt[0] += 1
        g_compute(p, M, pre, hooks=hk, last_nouter=True, fin=fin)
        self.stamp()
        def rsetup(q):
            q(f"s_and_b32 s{sJ}, s{sH}, 3")
            q(f"s_lshl_b32 s{sT1}, s{sB}, 2\ns_add_u32 s{sT1}, s{sT1}, s{sJ}\ns_mul_i32 s{sT1}, s{sT1}, {8*36864}\ns_add_u32 s{sT1}, s{sT1}, {WS_PART}")
            q(f"s_add_u32 s{SRD_P}, s{WS}, s{sT1}\ns_addc_u32 s{SRD_P+1}, s{WS+1}, 0\ns_mov_b32 s{SRD_P+2}, {8*36864}\ns_mov_b32 s{SRD_P+3}, 0x20000")
            q(f"s_mul_i32 s{sT1}, s{sB}, 147456")
            q(f"s_add_u32 s{SRD_OUT}, s{OUT}, s{sT1}\ns_addc_u32 s{SRD_OUT+1}, s{OUT+1}, 0\ns_mov_b32 s{SRD_OUT+2}, 147456\ns_mov_b32 s{SRD_OUT+3}, 0x20000")
            q(f"s_mov_b32 s{sW8}, s{sROLE}")
        if not self.sent:
            d.wait_vm(0)
            rsetup(d)
            p.wait_vm(0)
            rsetup(p)
            bar()
            self.stamp()
            lab = "L_nopub2"
            p(f"s_cmp_lg_u32 s{sW}, 0\ns_cbranch_scc1 {lab}")
            p(f"s_lshl_b32 s{sT0}, s{sID}, 7\ns_add_u32 s{sT0}, s{sT0}, 32768\nv_mov_b32 v3, s{sNON}")
            p.raw(f"    buffer_store_dword v3, off, s[{SRD_FLG}:{SRD_FLG+3}], s{sT0} {self.safe}")
            p(f"s_lshl_b32 s{sT0}, s{sB}, 5\ns_add_u32 s{sT0}, s{sT0}, s{sJ}\nv_and_b32 v4, 7, v1\nv_lshlrev_b32 v4, 2, v4\nv_add_u32 v4, s{sT0}, v4\nv_lshlrev_b32 v4, 7, v4\nv_add_u32 v4, 32768, v4")
            self.poll_pipe(p, lambda r: f"buffer_load_dword v{r}, v4, s[{SRD_FLG}:{SRD_FLG+3}], 0 offen sc1", f"s{sNON}", "f2", N=self.pN, gap=self.pgap)
            p.label(lab)
            p.vmq = []
            p.nop(2)
            bar()
            self.stamp()
            d("s_branch L_R")
            p.label("L_R")
            p.nop(2)
            r_phase9(p, sW8, SRD_P, SRD_OUT, sH, aux=self.safe, oaux=self.oaux)
        else:
            lab = "L_rdyok"
            p(f"s_cmp_lg_u32 s{sRDY}, 0\ns_cbranch_scc1 {lab}")
            p(f"s_lshl_b32 s{sT0}, s{sB}, 5\ns_add_u32 s{sT0}, s{sT0}, s{sJ}\nv_and_b32 v4, 7, v1\nv_lshlrev_b32 v4, 2, v4\nv_add_u32 v4, s{sT0}, v4\nv_lshlrev_b32 v4, 7, v4\nv_add_u32 v4, 65536, v4")
            vq = list(p.vmq)
            self.poll(p, None, f"buffer_load_dword v2, v4, s[{SRD_FLG}:{SRD_FLG+3}], 0 offen sc1", f"s{sNON}", "rdy")
            p.label(lab)
            p.vmq = vq
            p.nop(2)
            d.wait_vm(0)
            rsetup(d)
            rsetup(p)
            bar()
            self.stamp()
            d("s_branch L_R")
            p.label("L_R")
            p.nop(2)
            p.vmq = []
            r_phase10(p, sW8, SRD_P, SRD_OUT, sH, self.spin_max, aux=self.safe, sleep=self.rsleep)
    def write_stamps(self, p, n):
        if not self.stamps: return
        if self.dbgst:
            if p is not self.p: return
            DBG = sPTR + 12
            p.wait_all()
            p(f"s_memrealtime s[{sSTAMP+2*n}:{sSTAMP+2*n+1}]")
            p.raw("    s_waitcnt lgkmcnt(0)"); p.lgq = []
            p("s_mov_b64 exec, 1")
            p("v_mov_b32 v5, 0")
            p(f"s_not_b32 s{sT0}, s{sSTAMP}\nv_mov_b32 v6, s{sT0}")
            p(f"global_atomic_umax v5, v6, s[{DBG}:{DBG+1}] offset:4 sc1")
            for i in range(n + 1):
                p(f"v_mov_b32 v{8+i}, s{sSTAMP+2*i}")
                p(f"global_atomic_umax v5, v{8+i}, s[{DBG}:{DBG+1}] offset:{8+4*i} sc1")
            p("s_mov_b64 exec, -1")
            return
        WS = sPTR + 14
        p.wait_all()
        p(f"s_memrealtime s[{sSTAMP+2*n}:{sSTAMP+2*n+1}]")
        p.raw("    s_waitcnt lgkmcnt(0)"); p.lgq = []
        p(f"s_lshl_b32 s{sT0}, s2, 3\ns_add_u32 s{sT0}, s{sT0}, s{sROLE}\ns_lshl_b32 s{sT0}, s{sT0}, 8\ns_add_u32 s{sT0}, s{sT0}, {32<<20}")
        p(f"s_add_u32 s56, s{WS}, s{sT0}\ns_addc_u32 s57, s{WS+1}, 0")
        p("v_mov_b32 v5, 0")
        if p is self.p:
            p(f"v_mov_b32 v6, s{sFAST}\nv_mov_b32 v7, s{sXW}\nglobal_store_dwordx2 v5, v[6:7], s[56:57] offset:240")
            p("s_nop 1")
            p("s_sub_u32 s94, s94, s92\nv_mov_b32 v6, s94\nv_mov_b32 v7, 0\nglobal_store_dwordx2 v5, v[6:7], s[56:57] offset:232")
            p("s_nop 1")
        for i in range(n + 1):
            p(f"v_mov_b32 v6, s{sSTAMP+2*i}\nv_mov_b32 v7, s{sSTAMP+2*i+1}")
            p(f"global_store_dwordx2 v5, v[6:7], s[56:57] offset:{8*i}")
            p("s_nop 1")
    def build(self):
        p, d = self.p, self.d
        head = Prog(); head.unsafe_stamps = True
        self.head = head
        self.prologue_common(head)
        self.nstamp = 1 if self.stamps else 0; self.dstamp = self.nstamp
        p.hist = list(head.hist); d.hist = list(head.hist)
        p.smem_pending = list(head.smem_pending); d.smem_pending = list(head.smem_pending)
        p.lgq = list(head.lgq); d.lgq = list(head.lgq)
        self.slot = {}; self.free = list(range(NSLOT)); self.inflight = []; self.committed = []
        self.stg = {}; self.stgfree = [dSTG + 16*i for i in range(11)]; self.issued_at = {}
        H = ["K0", "K1"]
        for t in range(8):
            H.append(f"V{t}")
            if t + 2 < 8: H.append(f"K{t+2}")
        if self.plan is None:
            self.plan = {-1: ["X0", "W0", "X1", "W1"]}
            for k in range(0, 7): self.plan[k] = [f"X{k+2}", f"W{k+2}"]
            self.plan[7] = H[0:3]; self.plan[8] = H[3:5]
        order = []
        for k in sorted(self.plan): order += [op for op in self.plan[k] if op[0] != '!']
        self.stream = order + [h for h in H if h not in order]
        self.order = list(self.stream)
        if isinstance(self.warm_at, (tuple, list)):
            self.extra = {}
            for k, off in zip(self.warm_at, self.warm_offs):
                self.extra.setdefault(k, []).append(lambda off=off: self.wo_warm((off,)))
        else:
            self.extra = {self.warm_at: [self.wo_warm]} if self.warm_at is not None else {}
        if self.stall_at is not None:
            k, n = self.stall_at
            self.extra.setdefault(k, []).append(lambda n=n: self.d(f"s_sleep {n}"))
        if self.spf_plan:
            for k, items in self.spf_plan.items():
                self.extra.setdefault(k, []).append(lambda items=items: self.spf(items))
        self.wo_staged = {}
        if self.wo_stage_at:
            for n, (k, i) in enumerate(self.wo_stage_at):
                self.extra.setdefault(k, []).append(lambda i=i, n=n: self.wo_stage(i, n))
        self.wo_next = 0
        if self.dprio: d(f"s_setprio {self.dprio}")
        self.prologue_d()
        if self.touch:
            d(f"buffer_load_dword v24, off, s[{SRD_K}:{SRD_K+3}], 0 nt", tag='touch')
            d(f"buffer_load_dword v25, off, s[{SRD_V}:{SRD_V+3}], 0 nt", tag='touch')
            if self.plan[-1][0][0] in 'KV':
                d("v_lshlrev_b32 v30, 21, v1")
                d(f"buffer_load_dword v26, off, s[{SRD_X}:{SRD_X+3}], 0", tag='touch')
                d(f"buffer_load_dword v27, v30, s[{SRD_WQ}:{SRD_WQ+3}], 0 offen", tag='touch')
        self.pump(-1)
        self.prologue_c()
        if not self.noflag: self.nonce_a()
        self.q_phase()
        if self.stamps: p("s_memtime s[96:97]") if False else None
        self.stamp()
        if self.stamps is True or self.stamps == 'clk': p("s_memtime s[92:93]")
        self.attention()
        if self.stamps is True or self.stamps == 'clk': p("s_memtime s[94:95]")
        self.stamp()
        self.epilogue()
        if not self.notail: self.tail()
        if self.padto:
            p.label("L_pad")
            p.raw("    s_memrealtime s[94:95]")
            p.raw("    s_waitcnt lgkmcnt(0)")
            p.raw("    s_sub_u32 s94, s94, s92")
            p.raw(f"    s_cmp_lt_u32 s94, {self.padto}")
            p.raw("    s_cbranch_scc1 L_pad")
        if self.stamps and not self.notail:
            p(f"s_cmp_ge_u32 s{sROLE}, 4\ns_cbranch_scc1 L_end")
        self.write_stamps(p, self.nstamp)
        p("s_endpgm")
        if self.notail:
            self.write_stamps(d, self.dstamp)
            d("s_endpgm")
        if self.ldfirst:
            txt = head.out + d.out + ["L_compute:", "    s_nop 3"] + p.out + ["L_end:", "    s_endpgm"] + self.emit_rare()
        else:
            txt = head.out + p.out + ["L_loader:", "    s_nop 3"] + d.out + ["L_end:", "    s_endpgm"] + self.emit_rare()
        return "\n".join(txt) + "\n"

def HL():
    H = ["K0", "K1"]
    for t in range(8):
        H.append(f"V{t}")
        if t + 2 < 8: H.append(f"K{t+2}")
    return H
def mkplan(w, pairs, pre=0, commits=None):
    H = HL(); hi = 0
    plan = {k: [] for k in range(-1, 9)}
    plan[-1] += H[:pre]; hi = pre
    for k in range(-1, 9):
        for c in w.get(k, []): plan[k] += [f"X{c}", f"W{c}"]
        if k in pairs:
            plan[k] += H[hi:hi+2]; hi += 2
    staged = H[:hi]
    for k, ts in (commits or {}).items():
        plan[k] += ['!' + t for t in ts if t in staged]
    return plan, staged
def build_multi(kw, variants, sel='rot'):
    gens = []
    for i, var in enumerate(variants):
        plan, staged = var[0], var[1]
        kw2 = dict(kw); kw2.update(var[2] if len(var) > 2 else {})
        g = Gen(plan={k: list(v) for k, v in plan.items()}, stage=staged, sfx=f"_v{i}", **kw2)
        g.build(); gens.append(g)
    g0 = gens[0]
    for g in gens[1:]: assert g.p.out == g0.p.out, "compute code differs"
    n = len(gens)
    txt = list(g0.head.out) + g0.p.out + ["L_loader:", "    s_nop 3"]
    if n > 1:
        if sel == 'xcd': txt += [f"    s_lshr_b32 s{sT0}, s{sH}, 4"]
        elif sel == 'b4': txt += [f"    s_lshr_b32 s{sT0}, s{sB}, 2"]
        elif sel in ('b3', 'b5', 'b6'): txt += [f"    s_cmp_ge_u32 s{sB}, {int(sel[1])}", f"    s_cselect_b32 s{sT0}, 1, 0"]
        elif sel == 'b2': txt += [f"    s_lshr_b32 s{sT0}, s{sB}, 1"]
        elif sel == 'bpar': txt += [f"    s_and_b32 s{sT0}, s{sB}, 1"]
        elif sel == 'xcdpar': txt += [f"    s_lshr_b32 s{sT0}, s{sH}, 2", f"    s_and_b32 s{sT0}, s{sT0}, 1"]
        else: txt += [f"    s_add_u32 s{sT0}, s{sB}, s{sH}", f"    s_and_b32 s{sT0}, s{sT0}, {n-1}"]
        for i in range(1, n): txt += [f"    s_cmp_eq_u32 s{sT0}, {i}", f"    s_cbranch_scc1 L_var{i}"]
    for i, g in enumerate(gens):
        if i: txt += [f"L_var{i}:", "    s_nop 3"]
        txt += g.d.out
    txt += ["L_end:", "    s_endpgm"] + g0.emit_rare()
    return "\n".join(txt) + "\n", g0

def wrap(body, launch, vgpr=NVGPR, sgpr=102, accum=NARCH, name=NAME, header=""):
    return f"""{header}; @launch {launch}
.amdgcn_target "amdgcn-amd-amdhsa--gfx950"
.text
.globl {name}
.p2align 8
.type {name},@function
{name}:
{body}
.section .rodata,"a"
.p2align 6
.amdhsa_kernel {name}
  .amdhsa_next_free_vgpr {vgpr}
  .amdhsa_next_free_sgpr {sgpr}
  .amdhsa_accum_offset {accum}
  .amdhsa_group_segment_fixed_size 0
  .amdhsa_kernarg_size 64
  .amdhsa_user_sgpr_count 2
  .amdhsa_user_sgpr_kernarg_segment_ptr 1
  .amdhsa_system_sgpr_workgroup_id_x 1
.end_amdhsa_kernel
"""


HDR = open('standalone__mha_block_cached__near_ridge.s.ref').read().split("\n")[:9]
HDR = "\n".join(l for l in HDR if '@launch' not in l) + "\n"
if __name__ == "__main__":
    import sys
    L = "grid=(256,1,1) block=(512,1,1) lds=163840"
    base = dict(flyh=2, PD=6)
    b = dict(flyh=3, warm_at=10, PD=6)
    def out(nm, txt): open(nm + ".s", "w").write(wrap(txt, L, header=HDR))
    g = Gen(stamps=True, **b); out('fx_base', g.build())
    WB = {-1: [0, 1], 0: [2], 1: [3], 2: [4], 3: [5], 4: [6], 5: [7], 6: [8]}
    H = HL()
    def Eplan():
        plan, st = mkplan(WB, [], 0, None)
        plan[7] = H[0:3]; plan[8] = H[3:5]
        return plan, st
    def Lplan(n):
        com = {6: ["V0", "V1"], 7: ["K0", "K1"], 8: ["K2", "K3"]}
        plan, st = mkplan(WB, [], n, com)
        return plan, st
    g = Gen(**b); out('fw_base', g.build())
    g = Gen(stamps='arr', notail=True, **b); out('fx_base_arr', g.build())
    g = Gen(stamps='arr2', notail=True, **b); out('fx_base_arr2', g.build())
    b5 = dict(b); b5['flyh'] = 5
    g = Gen(stamps='arr2', notail=True, **b5); out('fx_f5_arr2', g.build())
    g = Gen(stamps='arr2', notail=True, nowo=True, flyh=3, warm_at=None, PD=6); out('fx_nowo_arr2', g.build())
    def planC(pa=4, pb=7, fast=True):
        P = {k: [] for k in range(-1, 9)}
        P[-1] = ["X0", "W0", "X1", "W1"]
        P[0] = ["X2", "W2", "X3", "W3"]
        P[1] = ["X4", "W4", "X5", "W5"]
        P[2] = ["!X5", "!W5", "X6", "W6", "X7", "W7"]
        P[3] = ["!X6", "!W6", "X8", "W8"]
        P[4] = ["!X7", "!W7"]
        P[5] = ["!X8", "!W8"]
        st = ["X5", "W5", "X6", "W6", "X7", "W7", "X8", "W8"]
        H = HL()
        P[pa] += H[0:2]; st += H[0:2]
        if pb <= 8:
            P[pb] += H[2:4]; st += H[2:4]
        P[7] = P[7] + ["!K0", "!K1"] if pa <= 5 else P[7]
        return P, st
    b['warm_at'] = 3; b['warm_offs'] = (0, 128, 284)
    g = Gen(stamps=True, **b); out('fy_base', g.build())
    g = Gen(stamps='g', **b); out('fy_st_g', g.build())
    g = Gen(stamps=True, nofast=True, **b); out('fy_nf', g.build())
    g = Gen(stamps=True, nofast=True, f0_at=12, f1_at=16, **b); out('fy_nf2', g.build())
    g = Gen(stamps=True, nofast=True, f0_at=16, f1_at=20, **b); out('fy_nf3', g.build())
    g = Gen(stamps=True, ofast='sc1', f0_at=12, f1_at=16, **b); out('fy_hy', g.build())
    g = Gen(stamps='g1', nofast=True, f0_at=12, f1_at=16, b_at=4, b_at2=14, **b); out('fy_st_g1', g.build())
    h = dict(ofast='sc1', f0_at=16, f1_at=20, **b)
    g = Gen(**h); out('ft_hy2', g.build())
    g = Gen(stamps=True, **h); out('fy_hy2', g.build())
    h = dict(h); h['qpd'] = 1; h['wpair'] = False
    H = HL()
    def bp():
        P = {-1: ["X0", "W0", "X1", "W1"]}
        for k in range(0, 7): P[k] = [f"X{k+2}", f"W{k+2}"]
        P[7] = []; P[8] = []
        return P
    hn = dict(h); hn['warm_at'] = None
    import copy
    P3 = bp(); P3[7] = H[0:2]
    def mk(nm, **kw):
        k2 = dict(h); k2.update(kw)
        g = Gen(plan=copy.deepcopy(P3), **k2); out(nm, g.build())
    h['nonce_late'] = True
    def spfplan(k0, k1, per, order=("K0", "K1", "V0", "K2")):
        lines = [(t, i) for t in order for i in range(32)]
        plan = {}; pos = 0
        for k in range(k0, k1 + 1):
            take = lines[pos:pos + per]; pos += per
            items = []
            for t, i in take:
                if items and items[-1][0] == t and items[-1][1] + items[-1][2] == i: items[-1] = (t, items[-1][1], items[-1][2] + 1)
                else: items.append((t, i, 1))
            plan[k] = items
        return plan
    mk('fy_base2', stamps=True)
    mk('fy_arr3', stamps='arr2', notail=True)
    mk('fy_rk1', stamps=True, rotk=1); mk('fy_rk2', stamps=True, rotk=2); mk('fy_rk3', stamps=True, rotk=3)
    mk('fr_base2'); mk('fr_rk1', rotk=1); mk('fr_rk2', rotk=2); mk('fr_rk3', rotk=3)
    hh = dict(h); hh['rotk'] = 1
    def Eplan3():
        P = copy.deepcopy(P3); return P, []
    h = dict(h); h['PD'] = 7; h['wgrp'] = 4
    mk2 = lambda nm, **kw: None
    def mkc(nm, n=4, **kw):
        k2 = dict(h); k2.update(kw)
        txt, g = build_multi(k2, [Eplan3(), Lplan(n)], sel='bh'); out(nm, txt)
    mkc('fy_cl4', stamps=True); mkc('fr_cl4')
    def Lslow(ks, fly=1, p7=True):
        P = copy.deepcopy(P3)
        if not p7: P[7] = []; P[8] = ["K0"]
        return P, [], dict(fly_sched={k: fly for k in ks})
    def Ev(**kw): return (copy.deepcopy(P3), [], kw)
    def Lp(n, **kw):
        P, st = Lplan(n); return (P, st, kw)
    th = lambda a, b_: dict(fly_sched={k: 2 for k in range(a, b_)})
    base = [Lp(7, flyh=5), Ev(flyh=5)]
    def mkv(nm, **kw):
        k2 = dict(h); k2.update(kw)
        txt, g = build_multi(dict(stamps=True, **k2), base, sel='b4'); out('fy_' + nm, txt)
        txt, g = build_multi(dict(**k2), base, sel='b4'); out('fq_' + nm, txt)
    WB3 = {-1: [0, 1, 2], 0: [3], 1: [4], 2: [5], 3: [6], 4: [7], 5: [8]}
    def Lp3(n, **kw):
        com = {6: ["V0", "V1"], 7: ["K0", "K1"], 8: ["K2", "K3"]}
        P, st = mkplan(WB3, [], n, com); return (P, st, kw)
    def Ev3(**kw):
        P, st = mkplan(WB3, [], 0, None); P[7] = H[0:2]; return (P, st, kw)
    def Ev3b(**kw):
        P, st = mkplan(WB3, [], 0, None); P[6] = H[0:2]; P[7] = ["!K0", "!K1"]; return (P, ["K0", "K1"], kw)
    def mkw(nm, base2, sel='b4', **kw):
        k2 = dict(h); k2.update(kw)
        txt, g = build_multi(dict(stamps=True, **k2), base2, sel=sel); out('fy_' + nm, txt)
        txt, g = build_multi(dict(**k2), base2, sel=sel); out('fq_' + nm, txt)
    mkw('x0', base)
    b2 = [Lp(7, flyh=5, lazy_commit=True), Ev(flyh=5)]
    mkw('e1', b2)
    def Lq(n, kp, **kw):
        com = {6: ["V0", "V1"], 7: ["K0", "K1"], 8: ["K2", "K3"]}
        P, st = mkplan(WB, [kp], n, com); return (P, st, kw)
    def Eq(kp, **kw):
        P, st = mkplan(WB, [kp], 0, {7: ["K0", "K1"]}); return (P, st, kw)
    lk = dict(flyh=5, lazy_commit=True)
    mkw('m3', b2, stall_at=(5, 16))
    mkw('x0', base)
    mkw('p1', base, dprio=3)
    mkw('p2', base, dprio=1)
```
